```python
import torch

def _softmax(x, axis=-1):
    return torch.softmax(x, dim=axis)
def _gelu(x):
    return torch.nn.functional.gelu(x, approximate="tanh")
def _silu(x):
    return torch.nn.functional.silu(x)
def _sigmoid(x):
    return torch.sigmoid(x)
def _layernorm(x, axis=-1, eps=1e-5):
    m = x.mean(dim=axis, keepdim=True)
    v = x.var(dim=axis, keepdim=True, unbiased=False)
    return (x - m) / torch.sqrt(v + eps)
def _scatter_add(tgt, idx, src, axis=0):
    return tgt.clone().index_add_(axis, idx, src)
def _segment_sum(src, seg, n):
    out = torch.zeros((n,) + src.shape[1:], dtype=src.dtype)
    return out.index_add_(0, seg, src)
def _pad(x, pw):
    flat = tuple(v for pair in reversed(pw) for v in pair)
    return torch.nn.functional.pad(x, flat)

kernel_name = 'standalone__gqa_softmax__near_ridge'

def setup_inputs():

    _w = (lambda a: (lambda t: t.to(torch.bfloat16) if t.is_floating_point() else t)(torch.as_tensor(a)))
    B, Hq, Hkv, Sq, Sk, D = 16, 32, 8, 288, 512, 128
    return {
        "q": _w((lambda *s: torch.randn(*s, dtype=torch.bfloat16) * 0.8)(B, Hq, Sq, D)),
        "k": _w((lambda *s: torch.randn(*s, dtype=torch.bfloat16) * 0.8)(B, Hkv, Sk, D)),
        "v": _w((lambda *s: torch.randn(*s, dtype=torch.bfloat16) * 0.05)(B, Hkv, Sk, D)),
    }

def reference(q, k, v):
    B, Hq, Sq, D = q.shape
    Hkv = k.shape[1]
    rep = Hq // Hkv
    k = (lambda x, n, axis: torch.repeat_interleave(x, n, dim=axis))(k, rep, axis=1)
    v = (lambda x, n, axis: torch.repeat_interleave(x, n, dim=axis))(v, rep, axis=1)
    scale = D ** -0.5
    scores = torch.einsum("bhqd,bhkd->bhqk", q, k) * scale
    p = _softmax(scores, axis=-1)
    return torch.einsum("bhqk,bhkd->bhqd", p, v)
```

```python
import re
def regs_of(tok):
    tok=tok.strip()
    m=re.fullmatch(r'(-|abs\()?([vas])\[(\d+):(\d+)\]\)?',tok)
    if m: return [(m.group(2),i) for i in range(int(m.group(3)),int(m.group(4))+1)]
    m=re.fullmatch(r'(-|abs\()?([vas])(\d+)\)?',tok)
    if m: return [(m.group(2),int(m.group(3)))]
    if tok=='vcc': return [('s','vcc')]
    if tok=='m0': return [('s','m0')]
    if tok=='exec': return [('s','exec')]
    return []
TRANS=('v_exp_f32','v_rcp_f32','v_log_f32','v_rsq_f32','v_sqrt_f32')
def parse(ins):
    ins=ins.split(';')[0].strip()
    op=ins.split()[0]
    rest=ins[len(op):].strip()
    ops=[o.strip() for o in rest.split(',')] if rest else []
    rest=rest.split(' op_sel')[0]
    ops=[o.strip() for o in rest.split(',')] if rest else []
    if ops: ops[-1]=ops[-1].split()[0] if ops[-1] else ''
    k=dict(op=op,w=[],r=[],kind='other',srcc=[])
    R=lambda lst:[x for o in lst for x in regs_of(o)]
    if op.startswith('v_mfma'):
        k['kind']='mfma'; k['w']=R(ops[:1]); k['r']=R(ops[1:3]); k['srcc']=R(ops[3:4]); k['passes']=8 if '32x32' in op else 4
    elif op.startswith('v_cmp'):
        k['kind']='valu'; k['w']=R(ops[:1]); k['r']=R(ops[1:])
    elif op.startswith('v_permlane32_swap'):
        k['kind']='valu'; k['w']=R(ops[:2]); k['r']=R(ops[:2]); k['perm']=True
    elif op.startswith('v_readfirstlane') or op.startswith('v_readlane'):
        k['kind']='valu'; k['w']=R(ops[:1]); k['r']=R(ops[1:]); k['rfl']=True
    elif op.startswith('v_'):
        k['kind']='valu'; k['w']=R(ops[:1]); k['r']=R(ops[1:])
        if op.startswith('v_fmac'): k['r']+=k['w']
        if op.startswith('v_cndmask') and len(ops)==3: k['r']+=[('s','vcc')]
        if op in TRANS: k['trans']=True
    elif op.startswith('ds_read'):
        k['kind']='ds'; k['w']=R(ops[:1]); k['r']=R(ops[1:2])
    elif op.startswith('ds_write'):
        k['kind']='ds'; k['r']=R(ops)
    elif op.startswith('buffer_load'):
        k['kind']='vmem'
        if ins.rstrip().endswith('lds'): k['r']=R(ops)+[('s','m0')]; k['dma']=True
        else: k['w']=R(ops[:1]); k['r']=R(ops[1:])
    elif op.startswith('buffer_store'):
        k['kind']='vmem'; k['r']=R(ops); k['store']=R(ops[:1])
    elif op.startswith('s_'):
        k['kind']='salu'
        if op.startswith(('s_cmp','s_cbranch','s_branch','s_barrier','s_waitcnt','s_nop','s_endpgm','s_setprio')): k['r']=R(ops)
        else: k['w']=R(ops[:1]); k['r']=R(ops[1:])
        if op=='s_nop': k['nop']=int(ops[0])+1
    return k
def check_hazards(lines):
    P=[]
    for l in lines:
        t=l.split(';')[0].strip()
        if not t or t.endswith(':') or t.startswith('.'): continue
        P.append((t,parse(t)))
    errs=[]
    tm=[]; t=0; lm=-99
    for tt,c in P:
        if c['kind']=='mfma': t=max(t,lm+8); lm=t
        tm.append(t); t+=c.get('nop',1)
    for i,(t,c) in enumerate(P):
        for j in range(i-1,max(-1,i-24),-1):
            d=tm[i]-tm[j]-P[j][1].get('nop',1)
            tp,p=P[j]
            need=0
            cw=set(c['w']); cr=set(c['r']); cc=set(c['srcc']); pw=set(p['w'])
            if p['kind']=='mfma':
                n=p['passes']
                if c['kind']=='mfma':
                    if pw&cr: need=max(need,n+4)
                    if pw&cc and p['w']!=c['srcc']: need=max(need,n+2)
                    if pw&cw and not (pw&cc) : need=max(need,n+2)
                elif c['kind'] in('valu','ds','vmem'):
                    if pw&(cr|cw): need=max(need,n+4)
                    if c['kind']=='valu' and set(p['srcc'])&cw: need=max(need,n-1)
            if p['kind']=='valu':
                vw={x for x in pw if x[0] in 'va'}; sw={x for x in pw if x[0]=='s'}
                if c['kind']=='mfma' and vw&(cr|cc): need=max(need,2)
                if c.get('perm') and vw&cr: need=max(need,2)
                if c.get('rfl') and vw&cr: need=max(need,1)
                if p.get('trans') and c['kind']=='valu' and vw&cr: need=max(need,1)
                if c['kind']=='valu' and sw&cr: need=max(need,2)
                if c['kind']=='vmem' and sw&cr: need=max(need,5)
            if p.get('store') and c['kind'] in('valu','ds','vmem') and set(p['store'])&cw: need=max(need,2)
            if p['kind']=='salu' and ('s','m0') in pw and c.get('dma'): need=max(need,1)
            if d<need: errs.append(f"hazard need {need} have {d}: [{tp}] -> [{t}]")
    return errs

class Gap:
    def __init__(s,mfma): s.mfma=mfma; s.pre=[]; s.valu=[]; s.extra=0
class VOp:
    def __init__(s,text,ready,dead):
        s.text=text; s.ready=ready; s.dead=dead; s.hard=dead
        s.cost=8 if text.split()[0] in TRANS else 4
class Sched:
    def __init__(s): s.gaps=[]; s.streams=[]
    def mfma(s,t): s.gaps.append(Gap(t)); return len(s.gaps)-1
    def pre(s,g,item,lo=None,maxpre=2):
        if lo is None: lo=g
        gg=g
        while gg>=lo and len(s.gaps[gg].pre)>=maxpre: gg-=1
        if gg<lo: gg=g
        s.gaps[gg].pre.append(item); return gg
    def stream(s,ops): s.streams.append(list(ops))
    def run(s,cap=22.0,soft=24):
        budget=lambda n:(24 if n<=1 else 20 if n==2 else 16 if n==3 else 12)
        heads=[0]*len(s.streams)
        for st in s.streams:
            for i in range(len(st)-2,-1,-1): st[i].dead=min(st[i].dead,st[i+1].dead-st[i+1].cost/cap); st[i].hard=min(st[i].hard,st[i+1].hard)
        for g,gap in enumerate(s.gaps):
            b=min(budget(len(gap.pre)+gap.extra),soft)
            used=0
            while True:
                c=[k for k,st in enumerate(s.streams) if heads[k]<len(st) and st[heads[k]].ready<=g]
                c.sort(key=lambda k:s.streams[k][heads[k]].dead)
                pick=None
                for k in c:
                    op=s.streams[k][heads[k]]
                    if used+op.cost<=b or op.hard<=g: pick=k; break
                if pick is None: break
                op=s.streams[pick][heads[pick]]
                gap.valu.append(op.text); used+=op.cost; heads[pick]+=1; op.at=g
        return [st[h:] for st,h in zip(s.streams,heads)]
def linearize(gaps,init,lgk_young=3):
    out=[]; ds=[]; vm=[]; st={'done':-1}
    def need_idx(mf):
        rs=set(parse(mf)['r']); k=-1
        for i,(g,w) in enumerate(ds):
            if i>st['done'] and w&rs: k=i
        return k
    def emit(items,g):
        for it in items:
            if isinstance(it,tuple):
                if it[0]=='vmwait':
                    idx=max(i for i,t in enumerate(vm) if t in it[1])
                    for t in it[1]: assert t in vm,t
                    n=len(vm)-1-idx; assert n<=63,n
                    out.append(f"s_waitcnt vmcnt({n})")
                elif it[0]=='vm':
                    if it[1].startswith('buffer_store'):
                        k=need_idx(it[1])
                        if k>=0:
                            n=min(len(ds)-1-k,15); out.append(f"s_waitcnt lgkmcnt({n})"); st['done']=len(ds)-1-n
                    vm.append(it[2]); out.append(it[1])
                elif it[0]=='multi': out.extend(it[1])
            else:
                out.append(it)
                if it.startswith('ds_'): ds.append([g,set(parse(it)['w'])])
    emit(init,-9)
    for g,gap in enumerate(gaps):
        k=need_idx(gap.mfma)
        if k>=0:
            n=len(ds)-1-k; out.append(f"s_waitcnt lgkmcnt({min(n,15)})"); st['done']=len(ds)-1-min(n,15)
        out.append(gap.mfma)
        if g+1<len(gaps):
            k=need_idx(gaps[g+1].mfma)
            if k>=0:
                kk=k
                for i in range(k,len(ds)):
                    if ds[i][0]<=g-lgk_young: kk=i
                n=min(len(ds)-1-kk,15)
                out.append(f"s_waitcnt lgkmcnt({n})"); st['done']=len(ds)-1-n
        emit(gap.pre,g)
        out.extend(gap.valu)
    return out,vm
```

```python
import sys,os
sys.path.insert(0,os.path.dirname(os.path.abspath(__file__)))
from gen_core import *
OPT=dict(LA=7,GB=2,soft=24,cap=22.0,stamp=0,dma0=4)
for a in sys.argv[2:]:
    k,v=a.split('='); OPT[k]=float(v) if '.' in v else int(v)
LA=OPT['LA']; GB=OPT['GB']
NAME='standalone__gqa_softmax__near_ridge'
def R(k,b,n): return f"{k}[{b}:{b+n-1}]"
MF='v_mfma_f32_32x32x16_bf16'
VQ,KA,VA,DK,DV,OOB=1,2,10,14,18,9
LA1,LB1,NEGA,NEGB,RA,RB=20,21,22,23,24,25
MKA,MVA,LA2,LB2,TMP=32,40,44,45,48
SWA,SRA=19,0
SB=[64,80,96,112]
BL={'A1':dict(q=('a',0),o=('a',128),row='s25'),'B1':dict(q=('a',32),o=('a',192),row='s26'),
    'A2':dict(q=('a',96),o=('v',128),row='s27'),'B2':dict(q=('a',32),o=('v',192),row='s28'),
    'M':dict(q=('a',0),o=('a',128),row='s29')}
S=Sched(); frags=[]
def newfrag(kind,texts):
    n=len(frags); b=64+4*(n%8); frags.append(dict(reads=[t(b) for t in texts],first=len(S.gaps),b=b)); return b
def kfrag(j,slot,half,mini):
    a=(MKA if mini else KA)+j; off=slot*16384+half*8192
    return newfrag('K',[lambda b:f"ds_read_b128 {R('a',b,4)}, v{a} offset:{off}"])
def vfrag(s,d,slot,half,mini):
    a=(MVA if mini else VA)+d
    return newfrag('V',[(lambda b,rd=rd:f"ds_read_b64_tr_b16 {R('a',b+2*rd,2)}, v{a} offset:{slot*16384+(32*half+16*s+8*rd)*256}") for rd in (0,1)])
def qk(blk,sb,j,f):
    q=BL[blk]['q']; c='0' if j==0 else R('v',sb,16)
    return S.mfma(f"{MF} {R('v',sb,16)}, {R('a',f,4)}, {R(q[0],q[1]+4*j,4)}, {c}")
def pv(blk,sb,s,d,f,first):
    o=BL[blk]['o']; od=R(o[0],o[1]+16*d,16); c='0' if first else od
    return S.mfma(f"{MF} {od}, {R('a',f,4)}, {R('v',sb+8*s,4)}, {c}")
step0={}; sdone={}; pdead={}
def names(u): return ('A1','B1') if u<16 else ('A2','B2')
def qk_phase(u):
    A,B=names(u); t=u//2
    for j in range(8):
        f=kfrag(j,t%4,u%2,False)
        ga=qk(A,SB[(u%2)*2],j,f); gb=qk(B,SB[(u%2)*2+1],j,f)
    sdone[(u,0)]=ga; sdone[(u,1)]=gb
def pv_phase(u):
    A,B=names(u); t=u//2
    for s in range(2):
        pdead[(u,0,s)]=len(S.gaps)-2; pdead[(u,1,s)]=len(S.gaps)-1
        for d in range(4):
            f=vfrag(s,d,t%4,u%2,False); first=(u%16==0 and s==0)
            pv(A,SB[(u%2)*2],s,d,f,first); pv(B,SB[(u%2)*2+1],s,d,f,first)
step0[-1]=0; qk_phase(0)
for u in range(31):
    step0[u]=len(S.gaps); qk_phase(u+1); pv_phase(u)
step0[31]=len(S.gaps)
for j in range(8):
    f=kfrag(j,0,0,True); ga=qk('M',SB[0],j,f)
    f=kfrag(j,1,0,True); gb=qk('M',SB[1],j,f)
sdone[('m',0)]=ga; sdone[('m',1)]=gb
pv_phase(31)
mst={}
for m in range(8):
    mst[m]=len(S.gaps)
    for i in range(8):
        if m+2<8:
            f=kfrag(i,(m+2)%4,0,True); g=qk('M',SB[(m+2)%4],i,f); sdone[('m',m+2)]=g
        s,d=i//4,i%4
        if d==0: pdead[('m',m,s)]=len(S.gaps)-2
        f=vfrag(s,d,m%4,0,True); pv('M',SB[m%4],s,d,f,m==0 and s==0)
NG=len(S.gaps)
init=[]
def dma(kind,tile,slot,tag,g):
    so='s23' if kind=='K' else 's33'; base=slot*16384+(0 if kind=='K' else 65536)
    srd='s[8:11]' if kind=='K' else 's[12:15]'
    its=[]
    for i in range(4):
        vo=DK+i if kind=='K' else DV
        t=f"buffer_load_dwordx4 v{vo}, {srd}, {so} offen offset:{i*1024} lds"
        its.append(('vm',t,tag))
    hdr=('multi',[f"s_add_u32 m0, s22, {base}",f"s_add_u32 {so}, s22, {tile*16384}"])
    if g is None: return [hdr]+its
    S.gaps[g].pre.append(hdr); S.gaps[g].extra+=1
    for i,it in enumerate(its): S.gaps[g+1+i].pre.append(it); S.gaps[g+1+i].extra+=1
    return g+5
def barrier(g,waits):
    if waits: S.gaps[g-1].pre.append(('vmwait',waits))
    S.gaps[g].pre.append('s_barrier')
def qload(blk,dst,j,tag):
    return ('vm',f"buffer_load_dwordx4 {R(dst[0],dst[1]+4*j,4)}, v{VQ}, s[4:7], {BL[blk]['row']} offen offset:{j*32}",tag)
init+=dma('K',0,0,'K0',None)
for j in range(8): init+=[qload('A1',('a',0),j,f'QA{j}'),qload('B1',('a',32),j,f'QB{j}')]
init+=dma('V',0,0,'V0',None)+dma('K',1,1,'K1',None)
init+=[('vmwait',['K0']),'s_barrier']
g=dma('V',1,1,'V1',OPT['dma0']); g=dma('K',2,2,'K2',g)
g=dma('V',2,2,'V2',step0[0]+GB+16)
for j in range(1,8): S.gaps[2*j-1].pre.append(('vmwait',[f'QA{j}',f'QB{j}']))
for t in range(16):
    g=step0[2*t]+GB
    w=[f'V{t}']+([f'K{t+1}'] if t<15 else ['QM'])
    if t==5: w+=['QA2','QB2']
    barrier(g,w)
    if t+3<16:
        g=dma('K',(t+3)%8,(t+3)%4,f'K{t+3}',g+1)
        if t>0: g=dma('V',(t+3)%8,(t+3)%4,f'V{t+3}',g)
        else: dma('V',3,3,'V3',step0[1]+2)
for j in range(8):
    S.gaps[step0[2]+16+2*j].pre.append(qload('A2',('a',96),j,'QA2'))
    S.gaps[step0[3]+16+2*j].pre.append(qload('B2',('v',224),j,'QB2'))
    S.gaps[step0[17]+16+2*j].pre.append(qload('M',('a',0),j,'QM'))
TO=[4,5,6,7,0,1,2,3]
g=step0[31]+17; barrier(g,[]); g=dma('K',TO[4],0,'MK4',g+1); dma('K',TO[5],1,'MK5',g)
for m,w,iss in ((1,['MK4'],[('K',6),('V',4)]),(2,['MK5'],[('K',7),('V',5)]),(3,['MK6','MV4'],[('V',6)]),(4,['MK7','MV5'],[('V',7)]),(5,['MV6'],[]),(6,['MV7'],[])):
    g=mst[m]; barrier(g,w); g+=1
    for k,x in iss: g=dma(k,TO[x],x%4,f'M{k}{x}',g)
last=-99
for n,fr in enumerate(frags):
    g=fr['first']-LA
    for t in fr['reads']:
        if g<0: init.append(t); continue
        gg=max(g,last)
        while len(S.gaps[gg].pre)>=2 and gg<fr['first']-4: gg+=1
        S.gaps[gg].pre.append(t); last=gg
init.append(('vmwait',['QA0','QB0']))
sm=[]
def maxcalc(bl,ready,dead):
    ops=[]
    for sb,neg,t,t2 in bl:
        ops.append(f"v_max3_f32 v{t}, v{sb}, v{sb+1}, v{sb+2}")
        for i in range(3,15,2): ops.append(f"v_max3_f32 v{t}, v{t}, v{sb+i}, v{sb+i+1}")
        ops+= [f"v_max_f32 v{t}, v{t}, v{sb+15}",f"v_mov_b32 v{t2}, v{t}","s_nop 1",f"v_permlane32_swap_b32 v{t}, v{t2}",
               f"v_max_f32 v{t}, v{t}, v{t2}",f"v_mul_f32 v{neg}, s32, v{t}"]
    for o in ops: sm.append(VOp(o,ready,dead))
def smgroup(sb,neg,l,s,ready,dead,first):
    b=sb+8*s; q=[]
    F=lambda i:f"v_fma_f32 v{b+i}, v{b+i}, s20, v{neg}"
    E=lambda i:f"v_exp_f32 v{b+i}, v{b+i}"
    A=lambda i:(f"v_mov_b32 v{l}, v{b+i}" if first and s==0 and i==0 else f"v_add_f32 v{l}, v{l}, v{b+i}")
    C=lambda i:f"v_cvt_pk_bf16_f32 v{b+i//2}, v{b+i-1}, v{b+i}"
    return [F,E,A,C]
def softmax(groups):
    vals=[]
    for gr in groups:
        f=smgroup(*gr)
        for i in range(8): vals.append((f,i,gr[4],gr[5]))
    n=len(vals)
    def op(k,w): f,i,r,d=vals[k]; sm.append(VOp(f[w](i),r,d))
    op(0,0)
    for k in range(n+1):
        if k<n: op(k,1)
        if k+1<n: op(k+1,0)
        if k>=1:
            op(k-1,2)
            if vals[k-1][1]%2==1: op(k-1,3)
for u in range(32):
    A,B=SB[(u%2)*2],SB[(u%2)*2+1]; ra,rb=sdone[(u,0)]+2,sdone[(u,1)]+2
    la,lb=(LA1,LB1) if u<16 else (LA2,LB2); fi=(u%16==0)
    if fi: maxcalc([(A,NEGA,30,46),(B,NEGB,31,47)],rb,pdead[(u,0,0)])
    softmax([(A,NEGA,la,0,ra,pdead[(u,0,0)],fi),(B,NEGB,lb,0,rb,pdead[(u,1,0)],fi),
             (A,NEGA,la,1,ra,pdead[(u,0,1)],fi),(B,NEGB,lb,1,rb,pdead[(u,1,1)],fi)])
maxcalc([(SB[0],NEGA,30,46)],sdone[('m',0)]+2,pdead[('m',0,0)])
for m in range(8):
    r=sdone[('m',m)]+2
    softmax([(SB[m%4],NEGA,LA1,0,r,pdead[('m',m,0)],m==0),(SB[m%4],NEGA,LA1,1,r,pdead[('m',m,1)],False)])
S.stream(sm)
qm=[]
for j in range(8):
    for k in range(4):
        qm.append(VOp(f"v_accvgpr_write_b32 a{32+4*j+k}, v{224+4*j+k}",step0[14]+2*j+2,step0[15]+2*j-1))
S.stream(qm)
def fin(l,r,mask,t):
    return [f"v_mov_b32 v{t}, v{l}","s_nop 1",f"v_permlane32_swap_b32 v{t}, v{l}",f"v_add_f32 v{t}, v{t}, v{l}",
            f"v_cmp_nlt_f32_e64 {mask}, v{t}, s30",f"v_rcp_f32 v{r}, v{t}"]
def unit(blk,d,g,r,k):
    o=BL[blk]['o']; b=o[1]+16*d+4*g; ops=[]; tmp=TMP+8*(k%2); ad=26+k%2
    ops.append(f"v_xor_b32 v{ad}, {(4*d+g)*16}, v{SWA}")
    if o[0]=='a':
        ops+=[f"v_accvgpr_read_b32 v{tmp+i}, a{b+i}" for i in range(8)]; b=tmp
    ops+=[f"v_mul_f32 v{b+i}, v{b+i}, v{r}" for i in range(8)]
    ops+=[f"v_cvt_pk_bf16_f32 v{b+i}, v{b+2*i}, v{b+2*i+1}" for i in range(4)]
    ops+=["s_nop 0",f"v_permlane32_swap_b32 v{b}, v{b+2}",f"v_permlane32_swap_b32 v{b+1}, v{b+3}"]
    ops.append(f"ds_write_b128 v{ad}, {R('v',b,4)}")
    return ops
def readback(blk):
    o=BL[blk]['o']; row=BL[blk]['row']; hi='s'+str(int(row[1:])+43)
    rd=[f"ds_read_b128 {R(o[0],o[1]+4*k,4)}, v{SRA} offset:{k*1024}" for k in range(8)]
    st=[f"buffer_store_dwordx4 {R(o[0],o[1]+4*k,4)}, v{DK+k%4}, s[16:19], {row if k<4 else hi} offen offset:{(k%4)*1024}" for k in range(8)]
    return rd,st
def epi(A,B,la,lb,ma,mb,ufin,dead):
    r0=step0[ufin]+25; ops=[]
    for o in fin(la,RA,ma,28)+fin(lb,RB,mb,29): ops.append(VOp(o,r0,dead))
    r1=step0[ufin]+33; k=0
    for blk,r in ((A,RA),(B,RB)):
        for d in range(4):
            for g in (0,2):
                for o in unit(blk,d,g,r,k): ops.append(VOp(o,r1,dead))
                k+=1
        ops.append(VOp("RB "+blk,r1,dead)); ops[-1].cost=0
    return ops
e1=epi('A1','B1',LA1,LB1,'s[40:41]','s[42:43]',15,step0[30]-40); S.stream(e1)
e2=epi('A2','B2',LA2,LB2,'s[44:45]','s[46:47]',31,10**6); S.stream(e2)
left=S.run(cap=OPT['cap'],soft=OPT['soft'])
assert all(len(x)==0 for x in left[:3]),[len(x) for x in left]
left2=[o.text for o in left[3]]
assert not any(x.startswith("v_rcp") for x in left2)
busy=-1; tailst=[]
for g in range(NG):
    v=S.gaps[g].valu; keep=[]
    for x in v:
        if x.startswith('ds_write'):
            assert g+1>busy,(g,busy)
            if g+1<NG: S.gaps[g+1].pre.append(x)
            else: left2.insert(0,x)
        elif x.startswith('RB'):
            rd,st=readback(x.split()[1])
            if g+2+8+4+OPT.get('stsp',6)*8<NG:
                for k in range(8): S.gaps[g+2+k].pre.append(rd[k])
                busy=g+2+7
                for k in range(8): S.gaps[g+14+OPT.get('stsp',6)*k].pre.append(('vm',st[k],'st'))
            else: left2.insert(0,x)
        else: keep.append(x)
    S.gaps[g].valu=keep
def expand(ops):
    o=[]
    for x in ops:
        if x.startswith('RB'):
            rd,st=readback(x.split()[1]); o+=rd
            for k in range(8): o+=[f"s_waitcnt lgkmcnt({7-k})",st[k]]
        else: o.append(x)
    return o
body,vm=linearize(S.gaps,init)
P=f"""s_cmp_ge_u32 s2, 256
s_cbranch_scc1 END
s_load_dwordx4 s[36:39], s[0:1], 0
s_load_dwordx4 s[52:55], s[0:1], 16
v_and_b32 v3, 63, v0
v_lshrrev_b32 v4, 6, v0
s_nop 0
v_readfirstlane_b32 s21, v4
s_lshr_b32 s3, s2, 4
s_lshl_b32 s3, s3, 3
s_and_b32 s34, s2, 7
s_add_u32 s3, s3, s34
s_lshr_b32 s34, s2, 3
s_and_b32 s34, s34, 1
s_mul_i32 s35, s3, 294912
s_mul_i32 s34, s34, 147456
s_add_u32 s35, s35, s34
s_lshl_b32 s3, s3, 17
s_lshl_b32 s22, s21, 12
s_lshl_b32 s25, s21, 14
s_add_u32 s26, s25, 8192
s_add_u32 s27, s25, 65536
s_add_u32 s28, s27, 8192
s_lshr_b32 s29, s21, 1
s_lshl_b32 s29, s29, 13
s_add_u32 s29, s29, 131072
s_and_b32 s31, s21, 1
s_mov_b32 s20, 0x3e0293ee
s_mov_b32 s32, 0xbe0293ee
s_mov_b32 s30, 0x4e800000
v_and_b32 v5, 31, v3
v_lshrrev_b32 v6, 5, v3
v_and_b32 v7, 15, v3
v_lshrrev_b32 v8, 4, v3
v_lshlrev_b32 v{VQ}, 8, v5
v_lshl_add_u32 v{VQ}, v6, 4, v{VQ}
v_xor_b32 v9, v7, v8
v_lshlrev_b32 v9, 4, v9
v_lshl_add_u32 v{DK}, v8, 8, v9
v_xor_b32 v{DK+1}, 64, v{DK}
v_xor_b32 v{DK+2}, 0x80, v{DK}
v_xor_b32 v{DK+3}, 0xc0, v{DK}
v_lshlrev_b32 v9, 2, v8
v_xor_b32 v9, v7, v9
v_lshlrev_b32 v9, 4, v9
v_lshl_add_u32 v{DV}, v8, 8, v9
s_waitcnt lgkmcnt(0)
s_add_u32 s4, s36, s35
s_addc_u32 s5, s37, 0
s_mov_b32 s6, 147456
s_mov_b32 s7, 0x00020000
s_add_u32 s8, s38, s3
s_addc_u32 s9, s39, 0
s_mov_b32 s10, 131072
s_mov_b32 s11, 0x00020000
s_add_u32 s12, s52, s3
s_addc_u32 s13, s53, 0
s_mov_b32 s14, 131072
s_mov_b32 s15, 0x00020000
s_add_u32 s16, s54, s35
s_addc_u32 s17, s55, 0
s_mov_b32 s18, 147456
s_mov_b32 s19, 0x00020000""".split('\n')
A2=f"""v_xor_b32 v28, v6, v7
v_lshlrev_b32 v28, 4, v28
v_lshl_add_u32 v28, v5, 8, v28
v_lshrrev_b32 v29, 2, v7
v_and_b32 v30, 3, v7
v_lshl_add_u32 v31, v6, 2, v29
v_lshlrev_b32 v31, 8, v31
v_and_b32 v46, 1, v8
v_lshlrev_b32 v46, 5, v46
v_add_u32 v31, v31, v46
v_lshrrev_b32 v46, 1, v30
v_lshl_add_u32 v31, v46, 4, v31
v_and_b32 v46, 1, v30
v_lshl_add_u32 v31, v46, 3, v31
v_add_u32 v31, 0x10000, v31
v_lshlrev_b32 v29, 6, v29
s_lshl_b32 s34, s21, 13
s_add_u32 s34, s34, 131072
v_add_u32 v{SWA}, s34, v28
v_lshlrev_b32 v46, 4, v3
v_add_u32 v{SRA}, s34, v46
s_add_u32 s68, s25, 4096
s_add_u32 s69, s26, 4096
s_add_u32 s70, s27, 4096
s_add_u32 s71, s28, 4096
s_lshl_b32 s34, s31, 13""".split('\n')
for d in range(4):
    A2+= [f"v_xor_b32 v46, {d*64}, v29",f"v_add_u32 v47, v31, v46",f"v_add_u32 v{MVA+d}, s34, v47"]
    A2.append(f"v_mov_b32 v{48+d}, v47")
for j in range(8): A2+=[f"v_xor_b32 v{52+j}, {j*32}, v28",f"v_add_u32 v{MKA+j}, s34, v{52+j}"]
A2+=[f"v_mov_b32 v{KA+j}, v{52+j}" for j in range(8)]+[f"v_mov_b32 v{VA+d}, v{48+d}" for d in range(4)]
k=next(i for i,l in enumerate(body) if l.startswith('s_waitcnt vmcnt'))
body=body[:k]+A2+body[k:]
T=["s_nop 7","s_nop 3"]
h=len(left2)//2
while h<len(left2) and not (h==0 or left2[h-1].startswith(('ds_write','RB'))): h+=1
T+=[f"v_mov_b32 v28, v{LA1}","s_nop 1",f"v_permlane32_swap_b32 v28, v{LA1}",f"v_add_f32 v28, v28, v{LA1}",f"v_mov_b32 v29, v{NEGA}",
    "v_mbcnt_lo_u32_b32 v3, -1, 0","v_mbcnt_hi_u32_b32 v3, -1, v3","v_lshlrev_b32 v30, 3, v3","s_lshl_b32 s34, s21, 9","s_add_u32 s34, s34, 65536","s_xor_b32 s35, s34, 512",
    "v_add_u32 v31, s35, v30","v_add_u32 v30, s34, v30","v_lshlrev_b32 v46, 4, v3","s_lshl_b32 s34, s21, 13",
    "s_xor_b32 s35, s34, 8192","v_add_u32 v47, s35, v46","v_add_u32 v46, s34, v46","ds_write_b64 v30, v[28:29]",
    "s_cmp_eq_u32 s31, 0","s_cbranch_scc0 PAR1"]
for p in (0,1):
    if p: T.append("PAR1:")
    for k in range(8): T.append(f"ds_write_b128 v46, {R('a',128+32*(1-p)+4*k,4)} offset:{k*1024}")
    for k in range(32): T.append(f"v_accvgpr_read_b32 v{96+k}, a{128+32*p+k}")
    if not p: T.append("s_branch PARJ")
T+=["PARJ:"]+expand(left2[:h])+["s_waitcnt lgkmcnt(0)","s_barrier","ds_read_b64 v[2:3], v31"]
for k in range(8): T.append(f"ds_read_b128 {R('v',64+4*k,4)}, v47 offset:{k*1024}")
T+=expand(left2[h:])
T+=["s_waitcnt lgkmcnt(0)",f"v_mov_b32 v{OOB}, 0x80000000","v_cmp_nlt_f32_e64 s[48:49], v28, s30","v_cmp_nlt_f32_e64 s[50:51], v2, s30","v_min_f32 v4, v29, v3",
    "v_sub_f32 v5, v4, v29","v_sub_f32 v6, v4, v3","v_exp_f32 v5, v5","v_exp_f32 v6, v6","s_or_b64 s[48:49], s[48:49], s[50:51]",
    "v_mul_f32 v7, v28, v5","v_fma_f32 v7, v2, v6, v7","v_rcp_f32 v7, v7","s_lshl_b32 s34, s31, 7",f"v_add_u32 v8, s34, v{VQ}",
    "v_mul_f32 v5, v5, v7","v_mul_f32 v6, v6, v7",f"v_cndmask_b32_e64 v8, v8, v{OOB}, s[48:49]"]
for k in range(32): T.append(f"v_mul_f32 v{96+k}, v{96+k}, v5")
T.append("s_waitcnt lgkmcnt(0)")
for k in range(32): T.append(f"v_fma_f32 v{96+k}, v{64+k}, v6, v{96+k}")
for un in range(4):
    b=96+8*un
    T+=[f"v_cvt_pk_bf16_f32 v{b+i}, v{b+2*i}, v{b+2*i+1}" for i in range(4)]
    T+=["s_nop 1",f"v_permlane32_swap_b32 v{b}, v{b+2}",f"v_permlane32_swap_b32 v{b+1}, v{b+3}",
        f"buffer_store_dwordx4 {R('v',b,4)}, v8, s[16:19], s29 offen offset:{(un//2)*64+(un%2)*32}"]
T+=["s_cmp_eq_u32 s31, 0","s_cbranch_scc1 KEEPM","s_mov_b64 s[48:49], 0","KEEPM:",
    "s_or_b64 s[50:51], s[40:41], s[42:43]","s_or_b64 s[50:51], s[50:51], s[44:45]","s_or_b64 s[50:51], s[50:51], s[46:47]",
    "s_or_b64 s[50:51], s[50:51], s[48:49]","s_cbranch_scc0 END"]
W=["s_waitcnt vmcnt(0)","s_mov_b32 s56, 0","v_mbcnt_lo_u32_b32 v3, -1, 0","v_mbcnt_hi_u32_b32 v3, -1, v3","v_and_b32 v4, 31, v3","v_lshrrev_b32 v5, 5, v3",
   "v_lshlrev_b32 v4, 1, v4","v_lshl_add_u32 v8, v5, 10, v4","SLOOP:","s_cmp_eq_u64 s[40:41], 0","s_cbranch_scc1 SNEXT"]
W+=[f"buffer_load_dwordx4 {R('v',128+4*j,4)}, v{VQ}, s[4:7], s25 offen offset:{j*32}" for j in range(8)]
def sqk():
    o=[f"buffer_load_dwordx4 {R('v',160+4*j,4)}, v{VQ}, s[8:11], s57 offen offset:{j*32}" for j in range(8)]
    o.append("s_waitcnt vmcnt(0)")
    o+=[f"{MF} v[64:79], {R('v',160+4*j,4)}, {R('v',128+4*j,4)}, {'0' if j==0 else 'v[64:79]'}" for j in range(8)]
    return o+["s_nop 7","s_nop 7"]
W+=["v_mov_b32 v10, 0xff800000","s_mov_b32 s57, 0","SMAX:"]+sqk()
W+=[f"v_max_f32 v10, v10, v{64+i}" for i in range(16)]
W+=["s_add_u32 s57, s57, 8192","s_cmp_lt_u32 s57, 131072","s_cbranch_scc1 SMAX",
    "v_mov_b32 v11, v10","s_nop 1","v_permlane32_swap_b32 v10, v11","v_max_f32 v10, v10, v11","v_mul_f32 v10, s32, v10","v_mov_b32 v12, 0"]
W+=[f"v_mov_b32 v{192+i}, 0" for i in range(64)]
W+=["s_mov_b32 s57, 0","SPV:"]+sqk()
for i in range(16): W+=[f"v_fma_f32 v{64+i}, v{64+i}, s20, v10",f"v_exp_f32 v{64+i}, v{64+i}","s_nop 0",f"v_add_f32 v12, v12, v{64+i}"]
W+=[f"v_cvt_pk_bf16_f32 v{80+i}, v{64+2*i}, v{65+2*i}" for i in range(8)]
for s in range(2):
    W.append(f"s_add_u32 s58, s57, {s*4096}")
    for d in range(4):
        W+=[f"buffer_load_ushort v{96+8*d+i}, v8, s[12:15], s58 offen offset:{(8*(i//4)+i%4)*256+d*64}" for i in range(8)]
    W.append("s_waitcnt vmcnt(0)")
    W+=[f"v_lshl_or_b32 v{160+i}, v{97+2*i}, 16, v{96+2*i}" for i in range(16)]
    W.append("s_nop 1")
    W+=[f"{MF} {R('v',192+16*d,16)}, {R('v',160+4*d,4)}, {R('v',80+4*s,4)}, {R('v',192+16*d,16)}" for d in range(4)]
    W+=["s_nop 7","s_nop 7"]
W+=["s_add_u32 s57, s57, 8192","s_cmp_lt_u32 s57, 131072","s_cbranch_scc1 SPV",
    "v_mov_b32 v11, v12","s_nop 1","v_permlane32_swap_b32 v11, v12","v_add_f32 v11, v11, v12","v_rcp_f32 v11, v11",
    f"v_cndmask_b32_e64 v13, v{OOB}, v{VQ}, s[40:41]"]
for d in range(4):
    for g in (0,2):
        b=192+16*d+4*g
        W+=[f"v_mul_f32 v{b+i}, v{b+i}, v11" for i in range(8)]
        W+=[f"v_cvt_pk_bf16_f32 v{b+i}, v{b+2*i}, v{b+2*i+1}" for i in range(4)]
        W+=["s_nop 1",f"v_permlane32_swap_b32 v{b}, v{b+2}",f"v_permlane32_swap_b32 v{b+1}, v{b+3}",
            f"buffer_store_dwordx4 {R('v',b,4)}, v13, s[16:19], s25 offen offset:{d*64+g*16}"]
W+=["s_waitcnt vmcnt(0)","SNEXT:"]
for i in range(4): W+=[f"s_mov_b64 s[{40+2*i}:{41+2*i}], s[{42+2*i}:{43+2*i}]",f"s_mov_b32 s{25+i}, s{26+i}"]
W+=["s_add_u32 s56, s56, 1","s_cmp_lt_u32 s56, 5","s_cbranch_scc1 SLOOP"]
allc=P+body+T+W
if OPT['stamp']:
    def stamp(i): return ["s_memtime s[60:61]","s_waitcnt lgkmcnt(0)",f"v_mov_b32 v47, s60",f"v_mov_b32 v46, {i*4}","v_add_u32 v46, s63, v46","s_nop 4","buffer_store_dword v47, v46, s[64:67], 0 offen"]
errs=check_hazards(allc)
for e in errs[:20]: print(e,file=sys.stderr)
print("hazards",len(errs),"lines",len(allc),"gaps",NG,"left2",len(left2),file=sys.stderr)
import collections
cost=0
for g in S.gaps:
    c=sum(8 if x.split()[0] in TRANS else 4 for x in g.valu); n=len(g.pre)+g.extra
    cost+=max(32,8+c+ (0 if n<=1 else 4*(n-1)))
print("est cycles",cost,file=sys.stderr)
hdr=open('cdna_kernels/'+NAME+'.s.ref').read().split('\n')
o=[]
for l in hdr:
    if l.startswith('; @launch'): o.append('; @launch grid=(256,1,1) block=(256,1,1) lds=163840')
    else: o.append(l)
    if l.startswith(NAME+'_kernel:'): break
o+=[('' if l.endswith(':') else '    ')+l for l in allc]
o+=["END:","s_endpgm",'.section .rodata,"a"','.p2align 6',f".amdhsa_kernel {NAME}_kernel","  .amdhsa_next_free_vgpr 512","  .amdhsa_next_free_sgpr 102",
"  .amdhsa_accum_offset 256","  .amdhsa_group_segment_fixed_size 0","  .amdhsa_kernarg_size 48","  .amdhsa_user_sgpr_count 2",
"  .amdhsa_user_sgpr_kernarg_segment_ptr 1","  .amdhsa_system_sgpr_workgroup_id_x 1",".end_amdhsa_kernel",""]
open(sys.argv[1],'w').write('\n'.join(o))
```

```python
import sys,os
sys.path.insert(0,os.path.dirname(os.path.abspath(__file__)))
from gen_core import *
OPT=dict(LA=7,GB=2,soft=24,cap=22.0,stamp=0,dma0=4)
for a in sys.argv[2:]:
    k,v=a.split('='); OPT[k]=float(v) if '.' in v else int(v)
LA=OPT['LA']; GB=OPT['GB']
NAME='standalone__gqa_softmax__near_ridge'
def R(k,b,n): return f"{k}[{b}:{b+n-1}]"
MF='v_mfma_f32_32x32x16_bf16'
VQ,KA,VA,DK,DV,OOB=1,2,10,14,18,9
LA1,LB1,NEGA,NEGB,RA,RB=20,21,22,23,24,25
MKA,MVA,LA2,LB2,TMP=32,40,44,45,48
SWA,SRA=19,0
SB=[64,80,96,112]
BL={'A1':dict(q=('a',0),o=('a',128),row='s25'),'B1':dict(q=('a',32),o=('a',192),row='s26'),
    'A2':dict(q=('a',96),o=('v',128),row='s27'),'B2':dict(q=('a',32),o=('v',192),row='s28'),
    'M':dict(q=('a',0),o=('a',128),row='s29')}
HI={'s25':'s68','s26':'s69','s27':'s70','s28':'s71','s29':'s59'}
S=Sched(); frags=[]
def newfrag(kind,texts):
    n=len(frags); b=64+4*(n%8); frags.append(dict(reads=[t(b) for t in texts],first=len(S.gaps),b=b)); return b
def kfrag(j,slot,half,mini):
    a=(MKA if mini else KA)+j; off=slot*16384+half*8192
    return newfrag('K',[lambda b:f"ds_read_b128 {R('a',b,4)}, v{a} offset:{off}"])
def vfrag(s,d,slot,half,mini):
    a=(MVA if mini else VA)+d
    return newfrag('V',[(lambda b,rd=rd:f"ds_read_b64_tr_b16 {R('a',b+2*rd,2)}, v{a} offset:{slot*16384+(32*half+16*s+8*rd)*256}") for rd in (0,1)])
def qk(blk,sb,j,f):
    q=BL[blk]['q']; c='0' if j==0 else R('v',sb,16)
    return S.mfma(f"{MF} {R('v',sb,16)}, {R('a',f,4)}, {R(q[0],q[1]+4*j,4)}, {c}")
def pv(blk,sb,s,d,f,first):
    o=BL[blk]['o']; od=R(o[0],o[1]+16*d,16); c='0' if first else od
    return S.mfma(f"{MF} {od}, {R('a',f,4)}, {R('v',sb+8*s,4)}, {c}")
step0={}; sdone={}; pdead={}
def names(u): return ('A1','B1') if u<16 else ('A2','B2')
def qk_phase(u):
    A,B=names(u); t=u//2
    for j in range(8):
        f=kfrag(j,t%4,u%2,False)
        ga=qk(A,SB[(u%2)*2],j,f); gb=qk(B,SB[(u%2)*2+1],j,f)
    sdone[(u,0)]=ga; sdone[(u,1)]=gb
def pv_phase(u):
    A,B=names(u); t=u//2
    for s in range(2):
        pdead[(u,0,s)]=len(S.gaps)-2; pdead[(u,1,s)]=len(S.gaps)-1
        for d in range(4):
            f=vfrag(s,d,t%4,u%2,False); first=(u%16==0 and s==0)
            pv(A,SB[(u%2)*2],s,d,f,first); pv(B,SB[(u%2)*2+1],s,d,f,first)
step0[-1]=0; qk_phase(0)
for u in range(31):
    step0[u]=len(S.gaps); qk_phase(u+1); pv_phase(u)
step0[31]=len(S.gaps)
for j in range(8):
    f=kfrag(j,0,0,True); ga=qk('M',SB[0],j,f)
    f=kfrag(j,1,0,True); gb=qk('M',SB[1],j,f)
sdone[('m',0)]=ga; sdone[('m',1)]=gb
pv_phase(31)
mst={}
for m in range(8):
    mst[m]=len(S.gaps)
    for i in range(8):
        if m+2<8:
            f=kfrag(i,(m+2)%4,0,True); g=qk('M',SB[(m+2)%4],i,f); sdone[('m',m+2)]=g
        s,d=i//4,i%4
        if d==0: pdead[('m',m,s)]=len(S.gaps)-2
        f=vfrag(s,d,m%4,0,True); pv('M',SB[m%4],s,d,f,m==0 and s==0)
NG=len(S.gaps)
init=[]
def dma(kind,tile,slot,tag,g):
    so='s23' if kind=='K' else 's33'; base=slot*16384+(0 if kind=='K' else 65536)
    srd='s[8:11]' if kind=='K' else 's[12:15]'
    its=[]
    for i in range(4):
        vo=DK+i if kind=='K' else DV
        first=(not tag.startswith('M')) and int(tag[1:])<8
        nt=' nt' if OPT.get('ntk1' if first else 'ntk2',0) else ''
        t=f"buffer_load_dwordx4 v{vo}, {srd}, {so} offen offset:{i*1024}{nt} lds"
        its.append(('vm',t,tag))
    hdr=('multi',[f"s_add_u32 m0, s22, {base}",f"s_add_u32 {so}, s22, {tile*16384}"])
    if g is None: return [hdr]+its
    S.gaps[g].pre.append(hdr); S.gaps[g].extra+=1
    for i,it in enumerate(its): S.gaps[g+1+i].pre.append(it); S.gaps[g+1+i].extra+=1
    return g+5
def barrier(g,waits):
    if waits: S.gaps[g-1].pre.append(('vmwait',waits))
    S.gaps[g].pre.append('s_barrier')
def qload(blk,dst,j,tag):
    if OPT.get('exp')==2: return ('vm',f"buffer_load_dwordx4 {R(dst[0],dst[1]+4*j,4)}, v{DK+j%4}, s[4:7], {BL[blk]['row'] if j<4 else HI[BL[blk]['row']]} offen offset:{(j%4)*1024}",tag)
    return ('vm',f"buffer_load_dwordx4 {R(dst[0],dst[1]+4*j,4)}, v{VQ}, s[4:7], {BL[blk]['row']} offen offset:{j*32}{' nt' if OPT.get('ntq',0) else ''}",tag)
init+=dma('K',0,0,'K0',None)
for j in range(8): init+=[qload('A1',('a',0),j,f'QA{j}'),qload('B1',('a',32),j,f'QB{j}')]
if OPT.get('exp'): init+=[('vmwait',['QB7']),('multi',['s_memtime s[96:97]','s_waitcnt lgkmcnt(0)'])]
init+=dma('V',0,0,'V0',None)+dma('K',1,1,'K1',None)
init+=[('vmwait',['K0']),'s_barrier']
g=dma('V',1,1,'V1',OPT['dma0']); g=dma('K',2,2,'K2',g)
g=dma('V',2,2,'V2',step0[0]+GB+16)
for j in range(1,8): S.gaps[2*j-1].pre.append(('vmwait',[f'QA{j}',f'QB{j}']))
for t in range(16):
    g=step0[2*t]+GB
    w=[f'V{t}']+([f'K{t+1}'] if t<15 else ['QM'])
    if t==7: w+=['QA2','QB2']
    barrier(g,w)
    if t+3<16:
        g=dma('K',(t+3)%8,(t+3)%4,f'K{t+3}',g+1)
        if t>0: g=dma('V',(t+3)%8,(t+3)%4,f'V{t+3}',g)
        else: dma('V',3,3,'V3',step0[1]+2)
for j in range(8):
    S.gaps[step0[OPT.get('q2s',2)]+16+2*j].pre.append(qload('A2',('a',96),j,'QA2'))
    S.gaps[step0[OPT.get('q2s',2)+1]+16+2*j].pre.append(qload('B2',('v',224),j,'QB2'))
    S.gaps[step0[17]+16+2*j].pre.append(qload('M',('a',0),j,'QM'))
TO=[4,5,6,7,0,1,2,3]
g=step0[31]+17; barrier(g,[]); g=dma('K',TO[4],0,'MK4',g+1); dma('K',TO[5],1,'MK5',g)
for m,w,iss in ((1,['MK4'],[('K',6),('V',4)]),(2,['MK5'],[('K',7),('V',5)]),(3,['MK6','MV4'],[('V',6)]),(4,['MK7','MV5'],[('V',7)]),(5,['MV6'],[]),(6,['MV7'],[])):
    g=mst[m]; barrier(g,w); g+=1
    for k,x in iss: g=dma(k,TO[x],x%4,f'M{k}{x}',g)
last=-99
for n,fr in enumerate(frags):
    g=fr['first']-LA
    for t in fr['reads']:
        if g<0: init.append(t); continue
        gg=max(g,last)
        while len(S.gaps[gg].pre)>=2 and gg<fr['first']-4: gg+=1
        S.gaps[gg].pre.append(t); last=gg
init.append(('vmwait',['QA0','QB0']))
sm=[]
def maxcalc(bl,ready,dead):
    ops=[]
    for sb,neg,t,t2 in bl:
        ops.append(f"v_max3_f32 v{t}, v{sb}, v{sb+1}, v{sb+2}")
        for i in range(3,15,2): ops.append(f"v_max3_f32 v{t}, v{t}, v{sb+i}, v{sb+i+1}")
        ops+= [f"v_max_f32 v{t}, v{t}, v{sb+15}",f"v_mov_b32 v{t2}, v{t}","s_nop 1",f"v_permlane32_swap_b32 v{t}, v{t2}",
               f"v_max_f32 v{t}, v{t}, v{t2}",f"v_mul_f32 v{neg}, s32, v{t}"]
    for o in ops: sm.append(VOp(o,ready,dead))
def smgroup(sb,neg,l,s,ready,dead,first):
    b=sb+8*s; q=[]
    F=lambda i:f"v_fma_f32 v{b+i}, v{b+i}, s20, v{neg}"
    E=lambda i:f"v_exp_f32 v{b+i}, v{b+i}"
    A=lambda i:(f"v_mov_b32 v{l}, v{b+i}" if first and s==0 and i==0 else f"v_add_f32 v{l}, v{l}, v{b+i}")
    C=lambda i:f"v_cvt_pk_bf16_f32 v{b+i//2}, v{b+i-1}, v{b+i}"
    return [F,E,A,C]
def softmax(groups):
    vals=[]
    for gr in groups:
        f=smgroup(*gr)
        for i in range(8): vals.append((f,i,gr[4],gr[5]))
    n=len(vals)
    def op(k,w): f,i,r,d=vals[k]; sm.append(VOp(f[w](i),r,d))
    op(0,0)
    for k in range(n+1):
        if k<n: op(k,1)
        if k+1<n: op(k+1,0)
        if k>=1:
            op(k-1,2)
            if vals[k-1][1]%2==1: op(k-1,3)
for u in range(32):
    A,B=SB[(u%2)*2],SB[(u%2)*2+1]; ra,rb=sdone[(u,0)]+2,sdone[(u,1)]+2
    la,lb=(LA1,LB1) if u<16 else (LA2,LB2); fi=(u%16==0)
    if fi: maxcalc([(A,NEGA,30,46),(B,NEGB,31,47)],rb,pdead[(u,0,0)])
    softmax([(A,NEGA,la,0,ra,pdead[(u,0,0)],fi),(B,NEGB,lb,0,rb,pdead[(u,1,0)],fi),
             (A,NEGA,la,1,ra,pdead[(u,0,1)],fi),(B,NEGB,lb,1,rb,pdead[(u,1,1)],fi)])
maxcalc([(SB[0],NEGA,30,46)],sdone[('m',0)]+2,pdead[('m',0,0)])
for m in range(8):
    r=sdone[('m',m)]+2
    softmax([(SB[m%4],NEGA,LA1,0,r,pdead[('m',m,0)],m==0),(SB[m%4],NEGA,LA1,1,r,pdead[('m',m,1)],False)])
S.stream(sm)
qm=[]
for j in range(8):
    for k in range(4):
        qm.append(VOp(f"v_accvgpr_write_b32 a{32+4*j+k}, v{224+4*j+k}",step0[14]+max(2*j+2,GB+1),step0[15]+2*j-1))
S.stream(qm)
def fin(l,r,mask,t):
    return [f"v_mov_b32 v{t}, v{l}","s_nop 1",f"v_permlane32_swap_b32 v{t}, v{l}",f"v_add_f32 v{t}, v{t}, v{l}",
            f"v_cmp_nlt_f32_e64 {mask}, v{t}, s30",f"v_rcp_f32 v{r}, v{t}"]
def unit(blk,d,g,r,k):
    o=BL[blk]['o']; b=o[1]+16*d+4*g; ops=[]; tmp=TMP+8*(k%2); ad=26+k%2
    ops.append(f"v_xor_b32 v{ad}, {(4*d+g)*16}, v{SWA}")
    if o[0]=='a':
        ops+=[f"v_accvgpr_read_b32 v{tmp+i}, a{b+i}" for i in range(8)]; b=tmp
    ops+=[f"v_mul_f32 v{b+i}, v{b+i}, v{r}" for i in range(8)]
    ops+=[f"v_cvt_pk_bf16_f32 v{b+i}, v{b+2*i}, v{b+2*i+1}" for i in range(4)]
    ops+=["s_nop 0",f"v_permlane32_swap_b32 v{b}, v{b+2}",f"v_permlane32_swap_b32 v{b+1}, v{b+3}"]
    ops.append(f"ds_write_b128 v{ad}, {R('v',b,4)}")
    return ops
def readback(blk):
    o=BL[blk]['o']; row=BL[blk]['row']; hi=HI[row]
    rd=[f"ds_read_b128 {R(o[0],o[1]+4*k,4)}, v{SRA} offset:{k*1024}" for k in range(8)]
    st=[f"buffer_store_dwordx4 {R(o[0],o[1]+4*k,4)}, v{DK+k%4}, s[16:19], {row if k<4 else hi} offen offset:{(k%4)*1024}{' nt' if OPT.get('nts',0) else ''}" for k in range(8)]
    return rd,st
def epi(A,B,la,lb,ma,mb,ufin,dead):
    r0=step0[ufin]+25; ops=[]
    for o in fin(la,RA,ma,28)+fin(lb,RB,mb,29): ops.append(VOp(o,r0,dead))
    r1=step0[ufin]+33; k=0
    for blk,r in ((A,RA),(B,RB)):
        for d in range(4):
            for g in (0,2):
                for o in unit(blk,d,g,r,k): ops.append(VOp(o,r1,dead))
                k+=1
        ops.append(VOp("RB "+blk,r1,dead)); ops[-1].cost=0
    return ops
e1=epi('A1','B1',LA1,LB1,'s[40:41]','s[42:43]',15,step0[30]-40); S.stream(e1)
e2=epi('A2','B2',LA2,LB2,'s[44:45]','s[46:47]',31,10**6); S.stream(e2)
left=S.run(cap=OPT['cap'],soft=OPT['soft'])
assert all(len(x)==0 for x in left[:3]),[len(x) for x in left]
left2=[o.text for o in left[3]]
assert not any(x.startswith("v_rcp") for x in left2)
busy=-1; tailst=[]
for g in range(NG):
    v=S.gaps[g].valu; keep=[]
    for x in v:
        if x.startswith('ds_write'):
            assert g+1>busy,(g,busy)
            if g+1<NG: S.gaps[g+1].pre.append(x)
            else: left2.insert(0,x)
        elif x.startswith('RB'):
            rd,st=readback(x.split()[1])
            if g+2+8+4+OPT.get('stsp',6)*8<NG:
                for k in range(8): S.gaps[g+2+k].pre.append(rd[k])
                busy=g+2+7
                for k in range(8): S.gaps[g+14+OPT.get('stsp',6)*k].pre.append(('vm',st[k],'st'))
            else: left2.insert(0,x)
        else: keep.append(x)
    S.gaps[g].valu=keep
def expand(ops):
    o=[]
    for x in ops:
        if x.startswith('RB'):
            rd,st=readback(x.split()[1]); o+=rd
            for k in range(8): o+=[f"s_waitcnt lgkmcnt({7-k})",st[k]]
        else: o.append(x)
    return o
STG=[0]+[step0[u] for u in ((0,1,2,3,4,5,6,7) if OPT['stamp']==2 else (0,2,4,8,16,24,31))]+([] if OPT['stamp']==2 else [mst[0],mst[4],NG-1])
def stamp(i): return [f"s_memtime s[{72+2*i}:{73+2*i}]","s_waitcnt lgkmcnt(0)"]
if OPT['stamp']:
    for i,gg in enumerate(STG): S.gaps[gg].pre.append(('multi',stamp(i+1)))
    if OPT['stamp']==2:
        k=init.index('s_barrier'); init[k:k+1]=[('multi',stamp(10)),'s_barrier',('multi',stamp(11))]; init.insert(0,('multi',stamp(9+3)))
        STG=STG+[0,0,0]
body,vm=linearize(S.gaps,init)
P=f"""s_cmp_ge_u32 s2, 256
s_cbranch_scc1 END
s_load_dwordx4 s[36:39], s[0:1], 0
s_load_dwordx4 s[52:55], s[0:1], 16
v_and_b32 v3, 63, v0
v_lshrrev_b32 v4, 6, v0
s_nop 0
v_readfirstlane_b32 s21, v4
s_lshr_b32 s3, s2, 4
s_lshl_b32 s3, s3, 3
s_and_b32 s34, s2, 7
s_add_u32 s3, s3, s34
s_lshr_b32 s34, s2, 3
s_and_b32 s34, s34, 1
s_mul_i32 s35, s3, 294912
s_mul_i32 s34, s34, 147456
s_add_u32 s35, s35, s34
s_lshl_b32 s3, s3, 17
s_lshl_b32 s22, s21, 12
s_lshl_b32 s25, s21, 14
s_add_u32 s26, s25, 8192
s_add_u32 s27, s25, 65536
s_add_u32 s28, s27, 8192
s_lshr_b32 s29, s21, 1
s_lshl_b32 s29, s29, 13
s_add_u32 s29, s29, 131072
s_and_b32 s31, s21, 1
s_add_u32 s68, s25, 4096
s_add_u32 s69, s26, 4096
s_add_u32 s70, s27, 4096
s_add_u32 s71, s28, 4096
s_add_u32 s59, s29, 4096
s_mov_b32 s20, 0x3e0293ee
s_mov_b32 s32, 0xbe0293ee
s_mov_b32 s30, 0x4e800000
v_and_b32 v5, 31, v3
v_lshrrev_b32 v6, 5, v3
v_and_b32 v7, 15, v3
v_lshrrev_b32 v8, 4, v3
v_lshlrev_b32 v{VQ}, 8, v5
v_lshl_add_u32 v{VQ}, v6, 4, v{VQ}
v_xor_b32 v9, v7, v8
v_lshlrev_b32 v9, 4, v9
v_lshl_add_u32 v{DK}, v8, 8, v9
v_xor_b32 v{DK+1}, 64, v{DK}
v_xor_b32 v{DK+2}, 0x80, v{DK}
v_xor_b32 v{DK+3}, 0xc0, v{DK}
v_lshlrev_b32 v9, 2, v8
v_xor_b32 v9, v7, v9
v_lshlrev_b32 v9, 4, v9
v_lshl_add_u32 v{DV}, v8, 8, v9
s_waitcnt lgkmcnt(0)
s_add_u32 s4, s36, s35
s_addc_u32 s5, s37, 0
s_mov_b32 s6, 147456
s_mov_b32 s7, 0x00020000
s_add_u32 s8, s38, s3
s_addc_u32 s9, s39, 0
s_mov_b32 s10, 131072
s_mov_b32 s11, 0x00020000
s_add_u32 s12, s52, s3
s_addc_u32 s13, s53, 0
s_mov_b32 s14, 131072
s_mov_b32 s15, 0x00020000
s_add_u32 s16, s54, s35
s_addc_u32 s17, s55, 0
s_mov_b32 s18, 147456
s_mov_b32 s19, 0x00020000""".split('\n')
A2=f"""v_xor_b32 v28, v6, v7
v_lshlrev_b32 v28, 4, v28
v_lshl_add_u32 v28, v5, 8, v28
v_lshrrev_b32 v29, 2, v7
v_and_b32 v30, 3, v7
v_lshl_add_u32 v31, v6, 2, v29
v_lshlrev_b32 v31, 8, v31
v_and_b32 v46, 1, v8
v_lshlrev_b32 v46, 5, v46
v_add_u32 v31, v31, v46
v_lshrrev_b32 v46, 1, v30
v_lshl_add_u32 v31, v46, 4, v31
v_and_b32 v46, 1, v30
v_lshl_add_u32 v31, v46, 3, v31
v_add_u32 v31, 0x10000, v31
v_lshlrev_b32 v29, 6, v29
s_lshl_b32 s34, s21, 13
s_add_u32 s34, s34, 131072
v_add_u32 v{SWA}, s34, v28
v_lshlrev_b32 v46, 4, v3
v_add_u32 v{SRA}, s34, v46
s_add_u32 s68, s25, 4096
s_add_u32 s69, s26, 4096
s_add_u32 s70, s27, 4096
s_add_u32 s71, s28, 4096
s_lshl_b32 s34, s31, 13""".split('\n')
for d in range(4):
    A2+= [f"v_xor_b32 v46, {d*64}, v29",f"v_add_u32 v47, v31, v46",f"v_add_u32 v{MVA+d}, s34, v47"]
    A2.append(f"v_mov_b32 v{48+d}, v47")
for j in range(8): A2+=[f"v_xor_b32 v{52+j}, {j*32}, v28",f"v_add_u32 v{MKA+j}, s34, v{52+j}"]
A2+=[f"v_mov_b32 v{KA+j}, v{52+j}" for j in range(8)]+[f"v_mov_b32 v{VA+d}, v{48+d}" for d in range(4)]
k=next(i for i,l in enumerate(body) if l.startswith('s_waitcnt vmcnt'))
body=body[:k]+A2+body[k:]
T=["s_nop 7","s_nop 3"]
h=len(left2)//2
while h<len(left2) and not (h==0 or left2[h-1].startswith(('ds_write','RB'))): h+=1
T+=[f"v_mov_b32 v28, v{LA1}","s_nop 1",f"v_permlane32_swap_b32 v28, v{LA1}",f"v_add_f32 v28, v28, v{LA1}",f"v_mov_b32 v29, v{NEGA}",
    "v_mbcnt_lo_u32_b32 v3, -1, 0","v_mbcnt_hi_u32_b32 v3, -1, v3","v_lshlrev_b32 v30, 3, v3","s_lshl_b32 s34, s21, 9","s_add_u32 s34, s34, 65536","s_xor_b32 s35, s34, 512",
    "v_add_u32 v31, s35, v30","v_add_u32 v30, s34, v30","v_lshlrev_b32 v46, 4, v3","s_lshl_b32 s34, s21, 13",
    "s_xor_b32 s35, s34, 8192","v_add_u32 v47, s35, v46","v_add_u32 v46, s34, v46","ds_write_b64 v30, v[28:29]",
    "s_cmp_eq_u32 s31, 0","s_cbranch_scc0 PAR1"]
for p in (0,1):
    if p: T.append("PAR1:")
    for k in range(8): T.append(f"ds_write_b128 v46, {R('a',128+32*(1-p)+4*k,4)} offset:{k*1024}")
    for k in range(32): T.append(f"v_accvgpr_read_b32 v{96+k}, a{128+32*p+k}")
    if not p: T.append("s_branch PARJ")
T+=["PARJ:"]+expand(left2[:h])+["s_waitcnt lgkmcnt(0)","s_barrier","ds_read_b64 v[2:3], v31"]
for k in range(8): T.append(f"ds_read_b128 {R('v',64+4*k,4)}, v47 offset:{k*1024}")
T+=expand(left2[h:])
T+=["s_waitcnt lgkmcnt(0)",f"v_mov_b32 v{OOB}, 0x80000000","v_cmp_nlt_f32_e64 s[48:49], v28, s30","v_cmp_nlt_f32_e64 s[50:51], v2, s30","v_min_f32 v4, v29, v3",
    "v_sub_f32 v5, v4, v29","v_sub_f32 v6, v4, v3","v_exp_f32 v5, v5","v_exp_f32 v6, v6","s_or_b64 s[48:49], s[48:49], s[50:51]",
    "v_mul_f32 v7, v28, v5","v_fma_f32 v7, v2, v6, v7","v_rcp_f32 v7, v7","s_lshl_b32 s34, s31, 7",f"v_add_u32 v8, s34, v{VQ}",
    "v_mul_f32 v5, v5, v7","v_mul_f32 v6, v6, v7",f"v_cndmask_b32_e64 v8, v8, v{OOB}, s[48:49]"]
for k in range(32): T.append(f"v_mul_f32 v{96+k}, v{96+k}, v5")
T.append("s_waitcnt lgkmcnt(0)")
for k in range(32): T.append(f"v_fma_f32 v{96+k}, v{64+k}, v6, v{96+k}")
for un in range(4):
    b=96+8*un
    T+=[f"v_cvt_pk_bf16_f32 v{b+i}, v{b+2*i}, v{b+2*i+1}" for i in range(4)]
    T+=["s_nop 1",f"v_permlane32_swap_b32 v{b}, v{b+2}",f"v_permlane32_swap_b32 v{b+1}, v{b+3}",
        f"buffer_store_dwordx4 {R('v',b,4)}, v8, s[16:19], s29 offen offset:{(un//2)*64+(un%2)*32}"]
T+=["s_cmp_eq_u32 s31, 0","s_cbranch_scc1 KEEPM","s_mov_b64 s[48:49], 0","KEEPM:",
    "s_or_b64 s[50:51], s[40:41], s[42:43]","s_or_b64 s[50:51], s[50:51], s[44:45]","s_or_b64 s[50:51], s[50:51], s[46:47]",
    "s_or_b64 s[50:51], s[50:51], s[48:49]","s_cbranch_scc0 END"]
W=["s_waitcnt vmcnt(0)","s_mov_b32 s56, 0","v_mbcnt_lo_u32_b32 v3, -1, 0","v_mbcnt_hi_u32_b32 v3, -1, v3","v_and_b32 v4, 31, v3","v_lshrrev_b32 v5, 5, v3",
   "v_lshlrev_b32 v4, 1, v4","v_lshl_add_u32 v8, v5, 10, v4","SLOOP:","s_cmp_eq_u64 s[40:41], 0","s_cbranch_scc1 SNEXT"]
W+=[f"buffer_load_dwordx4 {R('v',128+4*j,4)}, v{VQ}, s[4:7], s25 offen offset:{j*32}" for j in range(8)]
def sqk():
    o=[f"buffer_load_dwordx4 {R('v',160+4*j,4)}, v{VQ}, s[8:11], s57 offen offset:{j*32}" for j in range(8)]
    o.append("s_waitcnt vmcnt(0)")
    o+=[f"{MF} v[64:79], {R('v',160+4*j,4)}, {R('v',128+4*j,4)}, {'0' if j==0 else 'v[64:79]'}" for j in range(8)]
    return o+["s_nop 7","s_nop 7"]
W+=["v_mov_b32 v10, 0xff800000","s_mov_b32 s57, 0","SMAX:"]+sqk()
W+=[f"v_max_f32 v10, v10, v{64+i}" for i in range(16)]
W+=["s_add_u32 s57, s57, 8192","s_cmp_lt_u32 s57, 131072","s_cbranch_scc1 SMAX",
    "v_mov_b32 v11, v10","s_nop 1","v_permlane32_swap_b32 v10, v11","v_max_f32 v10, v10, v11","v_mul_f32 v10, s32, v10","v_mov_b32 v12, 0"]
W+=[f"v_mov_b32 v{192+i}, 0" for i in range(64)]
W+=["s_mov_b32 s57, 0","SPV:"]+sqk()
for i in range(16): W+=[f"v_fma_f32 v{64+i}, v{64+i}, s20, v10",f"v_exp_f32 v{64+i}, v{64+i}","s_nop 0",f"v_add_f32 v12, v12, v{64+i}"]
W+=[f"v_cvt_pk_bf16_f32 v{80+i}, v{64+2*i}, v{65+2*i}" for i in range(8)]
for s in range(2):
    W.append(f"s_add_u32 s58, s57, {s*4096}")
    for d in range(4):
        W+=[f"buffer_load_ushort v{96+8*d+i}, v8, s[12:15], s58 offen offset:{(8*(i//4)+i%4)*256+d*64}" for i in range(8)]
    W.append("s_waitcnt vmcnt(0)")
    W+=[f"v_lshl_or_b32 v{160+i}, v{97+2*i}, 16, v{96+2*i}" for i in range(16)]
    W.append("s_nop 1")
    W+=[f"{MF} {R('v',192+16*d,16)}, {R('v',160+4*d,4)}, {R('v',80+4*s,4)}, {R('v',192+16*d,16)}" for d in range(4)]
    W+=["s_nop 7","s_nop 7"]
W+=["s_add_u32 s57, s57, 8192","s_cmp_lt_u32 s57, 131072","s_cbranch_scc1 SPV",
    "v_mov_b32 v11, v12","s_nop 1","v_permlane32_swap_b32 v11, v12","v_add_f32 v11, v11, v12","v_rcp_f32 v11, v11",
    f"v_cndmask_b32_e64 v13, v{OOB}, v{VQ}, s[40:41]"]
for d in range(4):
    for g in (0,2):
        b=192+16*d+4*g
        W+=[f"v_mul_f32 v{b+i}, v{b+i}, v11" for i in range(8)]
        W+=[f"v_cvt_pk_bf16_f32 v{b+i}, v{b+2*i}, v{b+2*i+1}" for i in range(4)]
        W+=["s_nop 1",f"v_permlane32_swap_b32 v{b}, v{b+2}",f"v_permlane32_swap_b32 v{b+1}, v{b+3}",
            f"buffer_store_dwordx4 {R('v',b,4)}, v13, s[16:19], s25 offen offset:{d*64+g*16}"]
W+=["s_waitcnt vmcnt(0)","SNEXT:"]
for i in range(4): W+=[f"s_mov_b64 s[{40+2*i}:{41+2*i}], s[{42+2*i}:{43+2*i}]",f"s_mov_b32 s{25+i}, s{26+i}"]
W+=["s_add_u32 s56, s56, 1","s_cmp_lt_u32 s56, 5","s_cbranch_scc1 SLOOP"]
allc=P+body+T+W
if OPT['stamp']:
    n=len(STG)+1
    E=stamp(n)+["s_waitcnt vmcnt(0)"]+stamp(n+1)+["s_memrealtime s[60:61]","s_load_dwordx2 s[64:65], s[0:1], 40","s_waitcnt lgkmcnt(0)","s_mov_b32 s66, 0x100000","s_mov_b32 s67, 0x00020000",
       "s_lshl_b32 s63, s2, 2","s_add_u32 s63, s63, s21","s_lshl_b32 s63, s63, 7","v_mov_b32 v46, s63"]
    for i in range(1,n+2): E+=[f"s_sub_u32 s62, s{72+2*i}, s72","v_mov_b32 v47, s62",f"buffer_store_dword v47, v46, s[64:67], 0 offen offset:{4*(i-1)}"]
    E+=["s_getreg_b32 s62, hwreg(HW_REG_XCC_ID, 0, 4)","s_and_b32 s60, s2, 7","s_sub_u32 s62, s62, s60","v_mov_b32 v47, s62",f"buffer_store_dword v47, v46, s[64:67], 0 offen offset:{4*(n+3)}","s_memrealtime s[60:61]","s_waitcnt lgkmcnt(0)","s_sub_u32 s62, s60, s58","v_mov_b32 v47, s62",f"buffer_store_dword v47, v46, s[64:67], 0 offen offset:{4*(n+1)}",
        "v_mov_b32 v47, s58",f"buffer_store_dword v47, v46, s[64:67], 0 offen offset:{4*(n+2)}"]
    E+=["s_cmp_eq_u32 s2, 77","s_cbranch_scc0 NODBG","s_cmp_eq_u32 s21, 0","s_cbranch_scc0 NODBG","s_load_dwordx2 s[64:65], s[0:1], 32","s_waitcnt lgkmcnt(0)","s_mov_b32 s66, 256","v_mov_b32 v46, 0"]
    for i in range(1,n+2): E+=[f"s_sub_u32 s62, s{72+2*i}, s72","v_mov_b32 v47, s62",f"buffer_store_dword v47, v46, s[64:67], 0 offen offset:{4*(i-1)}","s_nop 1"]
    E+=["s_sub_u32 s62, s60, s58","v_mov_b32 v47, s62",f"buffer_store_dword v47, v46, s[64:67], 0 offen offset:{4*(n+1)}","NODBG:"]
    k=T.index("KEEPM:")
    allc=P[:2]+["s_memrealtime s[58:59]"]+stamp(0)+P[2:]+body+T[:k+1]+E+T[k+1:]+W
errs=check_hazards(allc)
for e in errs[:20]: print(e,file=sys.stderr)
print("hazards",len(errs),"lines",len(allc),"gaps",NG,"left2",len(left2),file=sys.stderr)
import collections
cost=0
for g in S.gaps:
    c=sum(8 if x.split()[0] in TRANS else 4 for x in g.valu); n=len(g.pre)+g.extra
    cost+=max(32,8+c+ (0 if n<=1 else 4*(n-1)))
print("est cycles",cost,file=sys.stderr)
hdr=open('cdna_kernels/'+NAME+'.s.ref').read().split('\n')
o=[]
for l in hdr:
    if l.startswith('; @launch'): o.append('; @launch grid=(256,1,1) block=(256,1,1) lds=163840')
    else: o.append(l)
    if l.startswith(NAME+'_kernel:'): break
o+=[('' if l.endswith(':') else '    ')+l for l in allc]
o+=["END:","s_endpgm",'.section .rodata,"a"','.p2align 6',f".amdhsa_kernel {NAME}_kernel","  .amdhsa_next_free_vgpr 512","  .amdhsa_next_free_sgpr 102",
"  .amdhsa_accum_offset 256","  .amdhsa_group_segment_fixed_size 0","  .amdhsa_kernarg_size 48","  .amdhsa_user_sgpr_count 2",
"  .amdhsa_user_sgpr_kernarg_segment_ptr 1","  .amdhsa_system_sgpr_workgroup_id_x 1",".end_amdhsa_kernel",""]
open(sys.argv[1],'w').write('\n'.join(o))
```

```python
import sys,os
sys.path.insert(0,os.path.dirname(os.path.abspath(__file__)))
from gen_core import *
OPT=dict(LA=7,GB=2,soft=24,cap=22.0,stamp=0,dma0=4,ntk1=1,ntk2=1,nts=1)
for a in sys.argv[2:]:
    k,v=a.split('='); OPT[k]=float(v) if '.' in v else int(v)
LA=OPT['LA']; GB=OPT['GB']
NAME='standalone__gqa_softmax__near_ridge'
def R(k,b,n): return f"{k}[{b}:{b+n-1}]"
MF='v_mfma_f32_32x32x16_bf16'
VQ,KA,VA,DK,DV,OOB=1,2,10,14,18,9
LA1,LB1,NEGA,NEGB,RA,RB=20,21,22,23,24,25
MKA,MVA,LA2,LB2,TMP=32,40,44,45,48
SWA,SRA=19,0
SB=[64,80,96,112]
BL={'A1':dict(q=('a',0),o=('a',128),row='s25'),'B1':dict(q=('a',32),o=('a',192),row='s26'),
    'A2':dict(q=('a',96),o=('v',128),row='s27'),'B2':dict(q=('a',32),o=('v',192),row='s28'),
    'M':dict(q=('a',0),o=('a',128),row='s29')}
HI={'s25':'s68','s26':'s69','s27':'s70','s28':'s71','s29':'s59'}
S=Sched(); frags=[]
def newfrag(kind,texts):
    n=len(frags); b=64+4*(n%8); frags.append(dict(reads=[t(b) for t in texts],first=len(S.gaps),b=b)); return b
def kfrag(j,slot,half,mini):
    a=(MKA if mini else KA)+j; off=slot*16384+half*8192
    return newfrag('K',[lambda b:f"ds_read_b128 {R('a',b,4)}, v{a} offset:{off}"])
def vfrag(s,d,slot,half,mini):
    a=(MVA if mini else VA)+d
    return newfrag('V',[(lambda b,rd=rd:f"ds_read_b64_tr_b16 {R('a',b+2*rd,2)}, v{a} offset:{slot*16384+(32*half+16*s+8*rd)*256}") for rd in (0,1)])
def qk(blk,sb,j,f):
    q=BL[blk]['q']; c='0' if j==0 else R('v',sb,16)
    return S.mfma(f"{MF} {R('v',sb,16)}, {R('a',f,4)}, {R(q[0],q[1]+4*j,4)}, {c}")
def pv(blk,sb,s,d,f,first):
    o=BL[blk]['o']; od=R(o[0],o[1]+16*d,16); c='0' if first else od
    return S.mfma(f"{MF} {od}, {R('a',f,4)}, {R('v',sb+8*s,4)}, {c}")
step0={}; sdone={}; pdead={}
def names(u): return ('A1','B1') if u<16 else ('A2','B2')
def qk_phase(u):
    A,B=names(u); t=u//2
    for j in range(8):
        f=kfrag(j,t%4,u%2,False)
        ga=qk(A,SB[(u%2)*2],j,f); gb=qk(B,SB[(u%2)*2+1],j,f)
    sdone[(u,0)]=ga; sdone[(u,1)]=gb
def pv_phase(u):
    A,B=names(u); t=u//2
    for s in range(2):
        pdead[(u,0,s)]=len(S.gaps)-2; pdead[(u,1,s)]=len(S.gaps)-1
        for d in range(4):
            f=vfrag(s,d,t%4,u%2,False); first=(u%16==0 and s==0)
            pv(A,SB[(u%2)*2],s,d,f,first); pv(B,SB[(u%2)*2+1],s,d,f,first)
step0[-1]=0; qk_phase(0)
for u in range(31):
    step0[u]=len(S.gaps); qk_phase(u+1); pv_phase(u)
step0[31]=len(S.gaps)
for j in range(8):
    f=kfrag(j,0,0,True); ga=qk('M',SB[0],j,f)
    f=kfrag(j,1,0,True); gb=qk('M',SB[1],j,f)
sdone[('m',0)]=ga; sdone[('m',1)]=gb
pv_phase(31)
mst={}
for m in range(8):
    mst[m]=len(S.gaps)
    for i in range(8):
        if m+2<8:
            f=kfrag(i,(m+2)%4,0,True); g=qk('M',SB[(m+2)%4],i,f); sdone[('m',m+2)]=g
        s,d=i//4,i%4
        if d==0: pdead[('m',m,s)]=len(S.gaps)-2
        f=vfrag(s,d,m%4,0,True); pv('M',SB[m%4],s,d,f,m==0 and s==0)
NG=len(S.gaps)
init=[]
def dma(kind,tile,slot,tag,g):
    so='s23' if kind=='K' else 's33'; base=slot*16384+(0 if kind=='K' else 65536)
    srd='s[8:11]' if kind=='K' else 's[12:15]'
    its=[]
    for i in range(4):
        vo=DK+i if kind=='K' else DV
        first=(not tag.startswith('M')) and int(tag[1:])<8
        nt=' nt' if OPT.get('ntk1' if first else 'ntk2',0) else ''
        t=f"buffer_load_dwordx4 v{vo}, {srd}, {so} offen offset:{i*1024}{nt} lds"
        its.append(('vm',t,tag))
    hdr=('multi',[f"s_add_u32 m0, s22, {base}",f"s_add_u32 {so}, s22, {tile*16384}"])
    if g is None: return [hdr]+its
    S.gaps[g].pre.append(hdr); S.gaps[g].extra+=1
    for i,it in enumerate(its): S.gaps[g+1+i].pre.append(it); S.gaps[g+1+i].extra+=1
    return g+5
def barrier(g,waits):
    if waits: S.gaps[g-1].pre.append(('vmwait',waits))
    S.gaps[g].pre.append('s_barrier')
def qload(blk,dst,j,tag):
    if OPT.get('exp')==2: return ('vm',f"buffer_load_dwordx4 {R(dst[0],dst[1]+4*j,4)}, v{DK+j%4}, s[4:7], {BL[blk]['row'] if j<4 else HI[BL[blk]['row']]} offen offset:{(j%4)*1024}{' nt' if OPT.get('ntq',0) else ''}",tag)
    return ('vm',f"buffer_load_dwordx4 {R(dst[0],dst[1]+4*j,4)}, v{VQ}, s[4:7], {BL[blk]['row']} offen offset:{j*32}{' nt' if OPT.get('ntq',0) else ''}",tag)
NTQ=' nt' if OPT.get('ntq',1) else ''
def qdma(blk,m0base,tag):
    row=BL[blk]['row']; its=[]
    for hf in range(2):
        its.append(("multi",[f"s_add_u32 m0, s24, {m0base+hf*4096}","s_nop 0"]))
        for i in range(4): its.append(('vm',f"buffer_load_dwordx4 v{DK+i}, s[4:7], {row if hf==0 else HI[row]} offen offset:{i*1024}{NTQ} lds",tag))
    return its
def qread(blk,j,off):
    q=BL[blk]['q']; return f"ds_read_b128 {R(q[0],q[1]+4*j,4)}, v{TMP+j} offset:{off}"
init+=dma('K',0,0,'K0',None)+qdma('A1',131072,'QA')+qdma('B1',98304,'QB')
init+=[('vmwait',['K0']),'s_barrier',('vmwait',['QA'])]+dma('V',0,0,'V0',None)+[qread('A1',j,32768) for j in range(8)]
init+=[('vmwait',['QB'])]+dma('K',1,1,'K1',None)+[qread('B1',j,0) for j in range(8)]
g=dma('V',1,1,'V1',OPT['dma0']); g=dma('K',2,2,'K2',g)
g=dma('V',2,2,'V2',step0[0]+GB+16)
for t in range(16):
    g=step0[2*t]+GB
    w=[f'V{t}']+([f'K{t+1}'] if t<15 else ['QM'])
    barrier(g,w)
    if t+3<16:
        g=dma('K',(t+3)%8,(t+3)%4,f'K{t+3}',g+1)
        if t>0: g=dma('V',(t+3)%8,(t+3)%4,f'V{t+3}',g)
        else: dma('V',3,3,'V3',step0[1]+2)
def place(items,g,stride=1):
    for it in items:
        S.gaps[g].pre.append(it)
        if not (isinstance(it,tuple) and it[0]=='multi'): S.gaps[g].extra+=(1 if isinstance(it,tuple) else 0); g+=stride
    return g
qa,qb=OPT.get('qa2',6),OPT.get('qb2',10)
place(qdma('A2',131072,'QA2'),step0[qa]+16+(0 if qa%2 else 0))
qw=OPT.get('qaw',3)
place([('vmwait',['QA2'])]+[qread('A2',j,32768) for j in range(8)],step0[qa+qw]+16)
place(qdma('B2',131072,'QB2'),step0[qb]+16)
S.gaps[step0[14]+1].pre.append(('vmwait',['QB2']))
for j in range(8): S.gaps[step0[14]+2*j+3].pre.append(qread('B2',j,32768))
for j in range(8): S.gaps[step0[17]+16+2*j].pre.append(qload('M',('a',0),j,'QM'))
TO=[4,5,6,7,0,1,2,3]
g=step0[31]+17; barrier(g,[]); g=dma('K',TO[4],0,'MK4',g+1); dma('K',TO[5],1,'MK5',g)
for m,w,iss in ((1,['MK4'],[('K',6),('V',4)]),(2,['MK5'],[('K',7),('V',5)]),(3,['MK6','MV4'],[('V',6)]),(4,['MK7','MV5'],[('V',7)]),(5,['MV6'],[]),(6,['MV7'],[])):
    g=mst[m]; barrier(g,w); g+=1
    for k,x in iss: g=dma(k,TO[x],x%4,f'M{k}{x}',g)
last=-99
for n,fr in enumerate(frags):
    g=fr['first']-LA
    for t in fr['reads']:
        if g<0: init.append(t); continue
        gg=max(g,last)
        while len(S.gaps[gg].pre)>=2 and gg<fr['first']-4: gg+=1
        S.gaps[gg].pre.append(t); last=gg
sm=[]
def maxcalc(bl,ready,dead):
    ops=[]
    for sb,neg,t,t2 in bl:
        ops.append(f"v_max3_f32 v{t}, v{sb}, v{sb+1}, v{sb+2}")
        for i in range(3,15,2): ops.append(f"v_max3_f32 v{t}, v{t}, v{sb+i}, v{sb+i+1}")
        ops+= [f"v_max_f32 v{t}, v{t}, v{sb+15}",f"v_mov_b32 v{t2}, v{t}","s_nop 1",f"v_permlane32_swap_b32 v{t}, v{t2}",
               f"v_max_f32 v{t}, v{t}, v{t2}",f"v_mul_f32 v{neg}, s32, v{t}"]
    for o in ops: sm.append(VOp(o,ready,dead))
def smgroup(sb,neg,l,s,ready,dead,first):
    b=sb+8*s; q=[]
    F=lambda i:f"v_fma_f32 v{b+i}, v{b+i}, s20, v{neg}"
    E=lambda i:f"v_exp_f32 v{b+i}, v{b+i}"
    A=lambda i:(f"v_mov_b32 v{l}, v{b+i}" if first and s==0 and i==0 else f"v_add_f32 v{l}, v{l}, v{b+i}")
    C=lambda i:f"v_cvt_pk_bf16_f32 v{b+i//2}, v{b+i-1}, v{b+i}"
    return [F,E,A,C]
def softmax(groups):
    vals=[]
    for gr in groups:
        f=smgroup(*gr)
        for i in range(8): vals.append((f,i,gr[4],gr[5]))
    n=len(vals)
    def op(k,w): f,i,r,d=vals[k]; sm.append(VOp(f[w](i),r,d))
    op(0,0)
    for k in range(n+1):
        if k<n: op(k,1)
        if k+1<n: op(k+1,0)
        if k>=1:
            op(k-1,2)
            if vals[k-1][1]%2==1: op(k-1,3)
for u in range(32):
    A,B=SB[(u%2)*2],SB[(u%2)*2+1]; ra,rb=sdone[(u,0)]+2,sdone[(u,1)]+2
    la,lb=(LA1,LB1) if u<16 else (LA2,LB2); fi=(u%16==0)
    if fi: maxcalc([(A,NEGA,30,46),(B,NEGB,31,47)],rb,pdead[(u,0,0)])
    softmax([(A,NEGA,la,0,ra,pdead[(u,0,0)],fi),(B,NEGB,lb,0,rb,pdead[(u,1,0)],fi),
             (A,NEGA,la,1,ra,pdead[(u,0,1)],fi),(B,NEGB,lb,1,rb,pdead[(u,1,1)],fi)])
maxcalc([(SB[0],NEGA,30,46)],sdone[('m',0)]+2,pdead[('m',0,0)])
for m in range(8):
    r=sdone[('m',m)]+2
    softmax([(SB[m%4],NEGA,LA1,0,r,pdead[('m',m,0)],m==0),(SB[m%4],NEGA,LA1,1,r,pdead[('m',m,1)],False)])
S.stream(sm)
S.stream([])
def fin(l,r,mask,t):
    return [f"v_mov_b32 v{t}, v{l}","s_nop 1",f"v_permlane32_swap_b32 v{t}, v{l}",f"v_add_f32 v{t}, v{t}, v{l}",
            f"v_cmp_nlt_f32_e64 {mask}, v{t}, s30",f"v_rcp_f32 v{r}, v{t}"]
def unit(blk,d,g,r,k):
    o=BL[blk]['o']; b=o[1]+16*d+4*g; ops=[]; tmp=TMP+8*(k%2); ad=26+k%2
    ops.append(f"v_xor_b32 v{ad}, {(4*d+g)*16}, v{SWA}")
    if o[0]=='a':
        ops+=[f"v_accvgpr_read_b32 v{tmp+i}, a{b+i}" for i in range(8)]; b=tmp
    ops+=[f"v_mul_f32 v{b+i}, v{b+i}, v{r}" for i in range(8)]
    ops+=[f"v_cvt_pk_bf16_f32 v{b+i}, v{b+2*i}, v{b+2*i+1}" for i in range(4)]
    ops+=["s_nop 0",f"v_permlane32_swap_b32 v{b}, v{b+2}",f"v_permlane32_swap_b32 v{b+1}, v{b+3}"]
    ops.append(f"ds_write_b128 v{ad}, {R('v',b,4)}")
    return ops
def readback(blk):
    o=BL[blk]['o']; row=BL[blk]['row']; hi=HI[row]
    rd=[f"ds_read_b128 {R(o[0],o[1]+4*k,4)}, v{SRA} offset:{k*1024}" for k in range(8)]
    st=[f"buffer_store_dwordx4 {R(o[0],o[1]+4*k,4)}, v{DK+k%4}, s[16:19], {row if k<4 else hi} offen offset:{(k%4)*1024}{' nt' if OPT.get('nts',0) else ''}" for k in range(8)]
    return rd,st
def epi(A,B,la,lb,ma,mb,ufin,dead):
    r0=step0[ufin]+25; ops=[]
    for o in fin(la,RA,ma,28)+fin(lb,RB,mb,29): ops.append(VOp(o,r0,dead))
    r1=step0[ufin]+33; k=0
    for blk,r in ((A,RA),(B,RB)):
        for d in range(4):
            for g in (0,2):
                for o in unit(blk,d,g,r,k): ops.append(VOp(o,r1,dead))
                k+=1
        ops.append(VOp("RB "+blk,r1,dead)); ops[-1].cost=0
    return ops
e1=epi('A1','B1',LA1,LB1,'s[40:41]','s[42:43]',15,step0[30]-40); S.stream(e1)
e2=epi('A2','B2',LA2,LB2,'s[44:45]','s[46:47]',31,10**6); S.stream(e2)
left=S.run(cap=OPT['cap'],soft=OPT['soft'])
assert all(len(x)==0 for x in left[:3]),[len(x) for x in left]
left2=[o.text for o in left[3]]
assert not any(x.startswith("v_rcp") for x in left2)
busy=-1; tailst=[]
for g in range(NG):
    v=S.gaps[g].valu; keep=[]
    for x in v:
        if x.startswith('ds_write'):
            assert g+1>busy,(g,busy)
            if g+1<NG: S.gaps[g+1].pre.append(x)
            else: left2.insert(0,x)
        elif x.startswith('RB'):
            rd,st=readback(x.split()[1])
            if g+2+8+4+OPT.get('stsp',6)*8<NG:
                for k in range(8): S.gaps[g+2+k].pre.append(rd[k])
                busy=g+2+7
                for k in range(8): S.gaps[g+14+OPT.get('stsp',6)*k].pre.append(('vm',st[k],'st'))
            else: left2.insert(0,x)
        else: keep.append(x)
    S.gaps[g].valu=keep
def expand(ops):
    o=[]
    for x in ops:
        if x.startswith('RB'):
            rd,st=readback(x.split()[1]); o+=rd
            for k in range(8): o+=[f"s_waitcnt lgkmcnt({7-k})",st[k]]
        else: o.append(x)
    return o
STG=[0]+[step0[u] for u in ((0,1,2,3,4,5,6,7) if OPT['stamp']==2 else (0,2,4,8,16,24,31))]+([] if OPT['stamp']==2 else [mst[0],mst[4],NG-1])
def stamp(i): return [f"s_memtime s[{72+2*i}:{73+2*i}]","s_waitcnt lgkmcnt(0)"]
if OPT['stamp']:
    for i,gg in enumerate(STG): S.gaps[gg].pre.append(('multi',stamp(i+1)))
    if OPT['stamp']==2:
        k=init.index('s_barrier'); init[k:k+1]=[('multi',stamp(10)),'s_barrier',('multi',stamp(11))]; init.insert(0,('multi',stamp(9+3)))
        STG=STG+[0,0,0]
body,vm=linearize(S.gaps,init)
P=f"""s_cmp_ge_u32 s2, 256
s_cbranch_scc1 END
s_load_dwordx4 s[36:39], s[0:1], 0
s_load_dwordx4 s[52:55], s[0:1], 16
v_and_b32 v3, 63, v0
v_lshrrev_b32 v4, 6, v0
s_nop 0
v_readfirstlane_b32 s21, v4
s_lshr_b32 s3, s2, 4
s_lshl_b32 s3, s3, 3
s_and_b32 s34, s2, 7
s_add_u32 s3, s3, s34
s_lshr_b32 s34, s2, 3
s_and_b32 s34, s34, 1
s_mul_i32 s35, s3, 294912
s_mul_i32 s34, s34, 147456
s_add_u32 s35, s35, s34
s_lshl_b32 s3, s3, 17
s_lshl_b32 s22, s21, 12
s_lshl_b32 s24, s21, 13
s_lshl_b32 s25, s21, 14
s_add_u32 s26, s25, 8192
s_add_u32 s27, s25, 65536
s_add_u32 s28, s27, 8192
s_lshr_b32 s29, s21, 1
s_lshl_b32 s29, s29, 13
s_add_u32 s29, s29, 131072
s_and_b32 s31, s21, 1
s_add_u32 s68, s25, 4096
s_add_u32 s69, s26, 4096
s_add_u32 s70, s27, 4096
s_add_u32 s71, s28, 4096
s_add_u32 s59, s29, 4096
s_mov_b32 s20, 0x3e0293ee
s_mov_b32 s32, 0xbe0293ee
s_mov_b32 s30, 0x4e800000
v_and_b32 v5, 31, v3
v_lshrrev_b32 v6, 5, v3
v_and_b32 v7, 15, v3
v_lshrrev_b32 v8, 4, v3
v_lshlrev_b32 v{VQ}, 8, v5
v_lshl_add_u32 v{VQ}, v6, 4, v{VQ}
v_xor_b32 v9, v7, v8
v_lshlrev_b32 v9, 4, v9
v_lshl_add_u32 v{DK}, v8, 8, v9
v_xor_b32 v{DK+1}, 64, v{DK}
v_xor_b32 v{DK+2}, 0x80, v{DK}
v_xor_b32 v{DK+3}, 0xc0, v{DK}
v_lshlrev_b32 v9, 2, v8
v_xor_b32 v9, v7, v9
v_lshlrev_b32 v9, 4, v9
v_lshl_add_u32 v{DV}, v8, 8, v9
s_waitcnt lgkmcnt(0)
s_add_u32 s4, s36, s35
s_addc_u32 s5, s37, 0
s_mov_b32 s6, 147456
s_mov_b32 s7, 0x00020000
s_add_u32 s8, s38, s3
s_addc_u32 s9, s39, 0
s_mov_b32 s10, 131072
s_mov_b32 s11, 0x00020000
s_add_u32 s12, s52, s3
s_addc_u32 s13, s53, 0
s_mov_b32 s14, 131072
s_mov_b32 s15, 0x00020000
s_add_u32 s16, s54, s35
s_addc_u32 s17, s55, 0
s_mov_b32 s18, 147456
s_mov_b32 s19, 0x00020000""".split('\n')
A2=f"""v_xor_b32 v28, v6, v7
v_lshlrev_b32 v28, 4, v28
v_lshl_add_u32 v28, v5, 8, v28
v_lshrrev_b32 v29, 2, v7
v_and_b32 v30, 3, v7
v_lshl_add_u32 v31, v6, 2, v29
v_lshlrev_b32 v31, 8, v31
v_and_b32 v46, 1, v8
v_lshlrev_b32 v46, 5, v46
v_add_u32 v31, v31, v46
v_lshrrev_b32 v46, 1, v30
v_lshl_add_u32 v31, v46, 4, v31
v_and_b32 v46, 1, v30
v_lshl_add_u32 v31, v46, 3, v31
v_add_u32 v31, 0x10000, v31
v_lshlrev_b32 v29, 6, v29
s_lshl_b32 s34, s21, 13
s_add_u32 s34, s34, 131072
v_add_u32 v{SWA}, s34, v28
v_lshlrev_b32 v46, 4, v3
v_add_u32 v{SRA}, s34, v46
s_add_u32 s68, s25, 4096
s_add_u32 s69, s26, 4096
s_add_u32 s70, s27, 4096
s_add_u32 s71, s28, 4096
s_lshl_b32 s34, s31, 13""".split('\n')
for d in range(4):
    A2+= [f"v_xor_b32 v46, {d*64}, v29",f"v_add_u32 v47, v31, v46",f"v_add_u32 v{MVA+d}, s34, v47"]
    A2.append(f"v_mov_b32 v{48+d}, v47")
for j in range(8): A2+=[f"v_xor_b32 v{52+j}, {j*32}, v28",f"v_add_u32 v{MKA+j}, s34, v{52+j}"]
A2+=[f"v_mov_b32 v{KA+j}, v{52+j}" for j in range(8)]+[f"v_mov_b32 v{VA+d}, v{48+d}" for d in range(4)]
A2+=[f"s_sub_u32 s34, 32768, 0",f"v_subrev_u32 v46, s34, v{SWA}"]+[f"v_xor_b32 v{TMP+j}, {j*32}, v46" for j in range(8)]
k=next(i for i,l in enumerate(body) if l.startswith('s_waitcnt vmcnt'))
body=body[:k]+A2+body[k:]
T=["s_nop 7","s_nop 3"]
h=len(left2)//2
while h<len(left2) and not (h==0 or left2[h-1].startswith(('ds_write','RB'))): h+=1
T+=[f"v_mov_b32 v28, v{LA1}","s_nop 1",f"v_permlane32_swap_b32 v28, v{LA1}",f"v_add_f32 v28, v28, v{LA1}",f"v_mov_b32 v29, v{NEGA}",
    "v_mbcnt_lo_u32_b32 v3, -1, 0","v_mbcnt_hi_u32_b32 v3, -1, v3","v_lshlrev_b32 v30, 3, v3","s_lshl_b32 s34, s21, 9","s_add_u32 s34, s34, 65536","s_xor_b32 s35, s34, 512",
    "v_add_u32 v31, s35, v30","v_add_u32 v30, s34, v30","v_lshlrev_b32 v46, 4, v3","s_lshl_b32 s34, s21, 13",
    "s_xor_b32 s35, s34, 8192","v_add_u32 v47, s35, v46","v_add_u32 v46, s34, v46","ds_write_b64 v30, v[28:29]",
    "s_cmp_eq_u32 s31, 0","s_cbranch_scc0 PAR1"]
for p in (0,1):
    if p: T.append("PAR1:")
    for k in range(8): T.append(f"ds_write_b128 v46, {R('a',128+32*(1-p)+4*k,4)} offset:{k*1024}")
    for k in range(32): T.append(f"v_accvgpr_read_b32 v{96+k}, a{128+32*p+k}")
    if not p: T.append("s_branch PARJ")
T+=["PARJ:"]+expand(left2[:h])+["s_waitcnt lgkmcnt(0)","s_barrier","ds_read_b64 v[2:3], v31"]
for k in range(8): T.append(f"ds_read_b128 {R('v',64+4*k,4)}, v47 offset:{k*1024}")
T+=expand(left2[h:])
T+=["s_waitcnt lgkmcnt(0)",f"v_mov_b32 v{OOB}, 0x80000000","v_cmp_nlt_f32_e64 s[48:49], v28, s30","v_cmp_nlt_f32_e64 s[50:51], v2, s30","v_min_f32 v4, v29, v3",
    "v_sub_f32 v5, v4, v29","v_sub_f32 v6, v4, v3","v_exp_f32 v5, v5","v_exp_f32 v6, v6","s_or_b64 s[48:49], s[48:49], s[50:51]",
    "v_mul_f32 v7, v28, v5","v_fma_f32 v7, v2, v6, v7","v_rcp_f32 v7, v7","s_lshl_b32 s34, s31, 7",f"v_add_u32 v8, s34, v{VQ}",
    "v_mul_f32 v5, v5, v7","v_mul_f32 v6, v6, v7",f"v_cndmask_b32_e64 v8, v8, v{OOB}, s[48:49]"]
for k in range(32): T.append(f"v_mul_f32 v{96+k}, v{96+k}, v5")
T.append("s_waitcnt lgkmcnt(0)")
for k in range(32): T.append(f"v_fma_f32 v{96+k}, v{64+k}, v6, v{96+k}")
for un in range(4):
    b=96+8*un
    T+=[f"v_cvt_pk_bf16_f32 v{b+i}, v{b+2*i}, v{b+2*i+1}" for i in range(4)]
    T+=["s_nop 1",f"v_permlane32_swap_b32 v{b}, v{b+2}",f"v_permlane32_swap_b32 v{b+1}, v{b+3}",
        f"buffer_store_dwordx4 {R('v',b,4)}, v8, s[16:19], s29 offen offset:{(un//2)*64+(un%2)*32}"]
T+=["s_cmp_eq_u32 s31, 0","s_cbranch_scc1 KEEPM","s_mov_b64 s[48:49], 0","KEEPM:",
    "s_or_b64 s[50:51], s[40:41], s[42:43]","s_or_b64 s[50:51], s[50:51], s[44:45]","s_or_b64 s[50:51], s[50:51], s[46:47]",
    "s_or_b64 s[50:51], s[50:51], s[48:49]","s_cbranch_scc0 END"]
W=["s_waitcnt vmcnt(0)","s_mov_b32 s56, 0","v_mbcnt_lo_u32_b32 v3, -1, 0","v_mbcnt_hi_u32_b32 v3, -1, v3","v_and_b32 v4, 31, v3","v_lshrrev_b32 v5, 5, v3",
   "v_lshlrev_b32 v4, 1, v4","v_lshl_add_u32 v8, v5, 10, v4","SLOOP:","s_cmp_eq_u64 s[40:41], 0","s_cbranch_scc1 SNEXT"]
W+=[f"buffer_load_dwordx4 {R('v',128+4*j,4)}, v{VQ}, s[4:7], s25 offen offset:{j*32}" for j in range(8)]
def sqk():
    o=[f"buffer_load_dwordx4 {R('v',160+4*j,4)}, v{VQ}, s[8:11], s57 offen offset:{j*32}" for j in range(8)]
    o.append("s_waitcnt vmcnt(0)")
    o+=[f"{MF} v[64:79], {R('v',160+4*j,4)}, {R('v',128+4*j,4)}, {'0' if j==0 else 'v[64:79]'}" for j in range(8)]
    return o+["s_nop 7","s_nop 7"]
W+=["v_mov_b32 v10, 0xff800000","s_mov_b32 s57, 0","SMAX:"]+sqk()
W+=[f"v_max_f32 v10, v10, v{64+i}" for i in range(16)]
W+=["s_add_u32 s57, s57, 8192","s_cmp_lt_u32 s57, 131072","s_cbranch_scc1 SMAX",
    "v_mov_b32 v11, v10","s_nop 1","v_permlane32_swap_b32 v10, v11","v_max_f32 v10, v10, v11","v_mul_f32 v10, s32, v10","v_mov_b32 v12, 0"]
W+=[f"v_mov_b32 v{192+i}, 0" for i in range(64)]
W+=["s_mov_b32 s57, 0","SPV:"]+sqk()
for i in range(16): W+=[f"v_fma_f32 v{64+i}, v{64+i}, s20, v10",f"v_exp_f32 v{64+i}, v{64+i}","s_nop 0",f"v_add_f32 v12, v12, v{64+i}"]
W+=[f"v_cvt_pk_bf16_f32 v{80+i}, v{64+2*i}, v{65+2*i}" for i in range(8)]
for s in range(2):
    W.append(f"s_add_u32 s58, s57, {s*4096}")
    for d in range(4):
        W+=[f"buffer_load_ushort v{96+8*d+i}, v8, s[12:15], s58 offen offset:{(8*(i//4)+i%4)*256+d*64}" for i in range(8)]
    W.append("s_waitcnt vmcnt(0)")
    W+=[f"v_lshl_or_b32 v{160+i}, v{97+2*i}, 16, v{96+2*i}" for i in range(16)]
    W.append("s_nop 1")
    W+=[f"{MF} {R('v',192+16*d,16)}, {R('v',160+4*d,4)}, {R('v',80+4*s,4)}, {R('v',192+16*d,16)}" for d in range(4)]
    W+=["s_nop 7","s_nop 7"]
W+=["s_add_u32 s57, s57, 8192","s_cmp_lt_u32 s57, 131072","s_cbranch_scc1 SPV",
    "v_mov_b32 v11, v12","s_nop 1","v_permlane32_swap_b32 v11, v12","v_add_f32 v11, v11, v12","v_rcp_f32 v11, v11",
    f"v_cndmask_b32_e64 v13, v{OOB}, v{VQ}, s[40:41]"]
for d in range(4):
    for g in (0,2):
        b=192+16*d+4*g
        W+=[f"v_mul_f32 v{b+i}, v{b+i}, v11" for i in range(8)]
        W+=[f"v_cvt_pk_bf16_f32 v{b+i}, v{b+2*i}, v{b+2*i+1}" for i in range(4)]
        W+=["s_nop 1",f"v_permlane32_swap_b32 v{b}, v{b+2}",f"v_permlane32_swap_b32 v{b+1}, v{b+3}",
            f"buffer_store_dwordx4 {R('v',b,4)}, v13, s[16:19], s25 offen offset:{d*64+g*16}"]
W+=["s_waitcnt vmcnt(0)","SNEXT:"]
for i in range(4): W+=[f"s_mov_b64 s[{40+2*i}:{41+2*i}], s[{42+2*i}:{43+2*i}]",f"s_mov_b32 s{25+i}, s{26+i}"]
W+=["s_add_u32 s56, s56, 1","s_cmp_lt_u32 s56, 5","s_cbranch_scc1 SLOOP"]
allc=P+body+T+W
if OPT['stamp']:
    n=len(STG)+1
    E=stamp(n)+["s_waitcnt vmcnt(0)"]+stamp(n+1)+["s_memrealtime s[60:61]","s_load_dwordx2 s[64:65], s[0:1], 40","s_waitcnt lgkmcnt(0)","s_mov_b32 s66, 0x100000","s_mov_b32 s67, 0x00020000",
       "s_lshl_b32 s63, s2, 2","s_add_u32 s63, s63, s21","s_lshl_b32 s63, s63, 7","v_mov_b32 v46, s63"]
    for i in range(1,n+2): E+=[f"s_sub_u32 s62, s{72+2*i}, s72","v_mov_b32 v47, s62",f"buffer_store_dword v47, v46, s[64:67], 0 offen offset:{4*(i-1)}"]
    E+=["s_getreg_b32 s62, hwreg(HW_REG_XCC_ID, 0, 4)","s_and_b32 s60, s2, 7","s_sub_u32 s62, s62, s60","v_mov_b32 v47, s62",f"buffer_store_dword v47, v46, s[64:67], 0 offen offset:{4*(n+3)}","s_memrealtime s[60:61]","s_waitcnt lgkmcnt(0)","s_sub_u32 s62, s60, s58","v_mov_b32 v47, s62",f"buffer_store_dword v47, v46, s[64:67], 0 offen offset:{4*(n+1)}",
        "v_mov_b32 v47, s58",f"buffer_store_dword v47, v46, s[64:67], 0 offen offset:{4*(n+2)}"]
    E+=["s_cmp_eq_u32 s2, 77","s_cbranch_scc0 NODBG","s_cmp_eq_u32 s21, 0","s_cbranch_scc0 NODBG","s_load_dwordx2 s[64:65], s[0:1], 32","s_waitcnt lgkmcnt(0)","s_mov_b32 s66, 256","v_mov_b32 v46, 0"]
    for i in range(1,n+2): E+=[f"s_sub_u32 s62, s{72+2*i}, s72","v_mov_b32 v47, s62",f"buffer_store_dword v47, v46, s[64:67], 0 offen offset:{4*(i-1)}","s_nop 1"]
    E+=["s_sub_u32 s62, s60, s58","v_mov_b32 v47, s62",f"buffer_store_dword v47, v46, s[64:67], 0 offen offset:{4*(n+1)}","NODBG:"]
    k=T.index("KEEPM:")
    allc=P[:2]+["s_memrealtime s[58:59]"]+stamp(0)+P[2:]+body+T[:k+1]+E+T[k+1:]+W
errs=check_hazards(allc)
for e in errs[:20]: print(e,file=sys.stderr)
print("hazards",len(errs),"lines",len(allc),"gaps",NG,"left2",len(left2),file=sys.stderr)
import collections
cost=0
for g in S.gaps:
    c=sum(8 if x.split()[0] in TRANS else 4 for x in g.valu); n=len(g.pre)+g.extra
    cost+=max(32,8+c+ (0 if n<=1 else 4*(n-1)))
print("est cycles",cost,file=sys.stderr)
hdr=open('cdna_kernels/'+NAME+'.s.ref').read().split('\n')
o=[]
for l in hdr:
    if l.startswith('; @launch'): o.append('; @launch grid=(256,1,1) block=(256,1,1) lds=163840')
    else: o.append(l)
    if l.startswith(NAME+'_kernel:'): break
o+=[('' if l.endswith(':') else '    ')+l for l in allc]
o+=["END:","s_endpgm",'.section .rodata,"a"','.p2align 6',f".amdhsa_kernel {NAME}_kernel","  .amdhsa_next_free_vgpr 512","  .amdhsa_next_free_sgpr 102",
"  .amdhsa_accum_offset 256","  .amdhsa_group_segment_fixed_size 0","  .amdhsa_kernarg_size 48","  .amdhsa_user_sgpr_count 2",
"  .amdhsa_user_sgpr_kernarg_segment_ptr 1","  .amdhsa_system_sgpr_workgroup_id_x 1",".end_amdhsa_kernel",""]
open(sys.argv[1],'w').write('\n'.join(o))
```

```python
import sys,os
sys.path.insert(0,os.path.dirname(os.path.abspath(__file__)))
from gen_core import *
OPT=dict(LA=7,GB=2,soft=24,cap=22.0,stamp=0,dma0=4,ntk1=1,ntk2=1,nts=1)
for a in sys.argv[2:]:
    k,v=a.split('='); OPT[k]=float(v) if '.' in v else int(v)
LA=OPT['LA']; GB=OPT['GB']
NAME='standalone__gqa_softmax__near_ridge'
def R(k,b,n): return f"{k}[{b}:{b+n-1}]"
MF='v_mfma_f32_32x32x16_bf16'
VQ,KA,VA,DK,DV,OOB=1,2,10,14,18,9
LA1,LB1,NEGA,NEGB,RA,RB=20,21,22,23,24,25
MKA,MVA,LA2,LB2,TMP=32,40,44,45,48
SWA,SRA=19,0
SB=[64,80,96,112]
BL={'A1':dict(q=('a',0),o=('a',128),row='s25'),'B1':dict(q=('a',32),o=('a',192),row='s26'),
    'A2':dict(q=('a',96),o=('v',128),row='s27'),'B2':dict(q=('a',32),o=('v',192),row='s28'),
    'M':dict(q=('a',0),o=('a',128),row='s29')}
HI={'s25':'s68','s26':'s69','s27':'s70','s28':'s71','s29':'s59'}
S=Sched(); frags=[]
def newfrag(kind,texts):
    n=len(frags); b=64+4*(n%8); frags.append(dict(reads=[t(b) for t in texts],first=len(S.gaps),b=b)); return b
def kfrag(j,slot,half,mini):
    a=(MKA if mini else KA)+j; off=slot*16384+half*8192
    return newfrag('K',[lambda b:f"ds_read_b128 {R('a',b,4)}, v{a} offset:{off}"])
def vfrag(s,d,slot,half,mini):
    a=(MVA if mini else VA)+d
    return newfrag('V',[(lambda b,rd=rd:f"ds_read_b64_tr_b16 {R('a',b+2*rd,2)}, v{a} offset:{slot*16384+(32*half+16*s+8*rd)*256}") for rd in (0,1)])
def qk(blk,sb,j,f):
    q=BL[blk]['q']; c='0' if j==0 else R('v',sb,16)
    return S.mfma(f"{MF} {R('v',sb,16)}, {R('a',f,4)}, {R(q[0],q[1]+4*j,4)}, {c}")
def pv(blk,sb,s,d,f,first):
    o=BL[blk]['o']; od=R(o[0],o[1]+16*d,16); c='0' if first else od
    return S.mfma(f"{MF} {od}, {R('a',f,4)}, {R('v',sb+8*s,4)}, {c}")
step0={}; sdone={}; pdead={}
def names(u): return ('A1','B1') if u<16 else ('A2','B2')
def qk_phase(u):
    A,B=names(u); t=u//2
    for j in range(8):
        f=kfrag(j,t%4,u%2,False)
        ga=qk(A,SB[(u%2)*2],j,f); gb=qk(B,SB[(u%2)*2+1],j,f)
    sdone[(u,0)]=ga; sdone[(u,1)]=gb
def pv_phase(u):
    A,B=names(u); t=u//2
    for s in range(2):
        pdead[(u,0,s)]=len(S.gaps)-2; pdead[(u,1,s)]=len(S.gaps)-1
        for d in range(4):
            f=vfrag(s,d,t%4,u%2,False); first=(u%16==0 and s==0)
            pv(A,SB[(u%2)*2],s,d,f,first); pv(B,SB[(u%2)*2+1],s,d,f,first)
step0[-1]=0; qk_phase(0)
for u in range(31):
    step0[u]=len(S.gaps); qk_phase(u+1); pv_phase(u)
step0[31]=len(S.gaps)
for j in range(8):
    f=kfrag(j,0,0,True); ga=qk('M',SB[0],j,f)
    f=kfrag(j,1,0,True); gb=qk('M',SB[1],j,f)
sdone[('m',0)]=ga; sdone[('m',1)]=gb
pv_phase(31)
mst={}
for m in range(8):
    mst[m]=len(S.gaps)
    for i in range(8):
        if m+2<8:
            f=kfrag(i,(m+2)%4,0,True); g=qk('M',SB[(m+2)%4],i,f); sdone[('m',m+2)]=g
        s,d=i//4,i%4
        if d==0: pdead[('m',m,s)]=len(S.gaps)-2
        f=vfrag(s,d,m%4,0,True); pv('M',SB[m%4],s,d,f,m==0 and s==0)
NG=len(S.gaps)
init=[]
def dma(kind,tile,slot,tag,g):
    so='s23' if kind=='K' else 's33'; base=slot*16384+(0 if kind=='K' else 65536)
    srd='s[8:11]' if kind=='K' else 's[12:15]'
    its=[]
    for i in range(4):
        vo=DK+i if kind=='K' else DV
        first=(not tag.startswith('M')) and int(tag[1:])<8
        nt=' nt' if OPT.get('ntk1' if first else 'ntk2',0) else ''
        t=f"buffer_load_dwordx4 v{vo}, {srd}, {so} offen offset:{i*1024}{nt} lds"
        its.append(('vm',t,tag))
    hdr=('multi',[f"s_add_u32 m0, s22, {base}",f"s_add_u32 {so}, s22, {tile*16384}"])
    if g is None: return [hdr]+its
    S.gaps[g].pre.append(hdr); S.gaps[g].extra+=1
    for i,it in enumerate(its): S.gaps[g+1+i].pre.append(it); S.gaps[g+1+i].extra+=1
    return g+5
def barrier(g,waits):
    if waits: S.gaps[g-1].pre.append(('vmwait',waits))
    S.gaps[g].pre.append('s_barrier')
def qload(blk,dst,j,tag):
    if OPT.get('exp')==2: return ('vm',f"buffer_load_dwordx4 {R(dst[0],dst[1]+4*j,4)}, v{DK+j%4}, s[4:7], {BL[blk]['row'] if j<4 else HI[BL[blk]['row']]} offen offset:{(j%4)*1024}{' nt' if OPT.get('ntq',0) else ''}",tag)
    return ('vm',f"buffer_load_dwordx4 {R(dst[0],dst[1]+4*j,4)}, v{VQ}, s[4:7], {BL[blk]['row']} offen offset:{j*32}{' nt' if OPT.get('ntq',0) else ''}",tag)
NTQ=' nt' if OPT.get('ntq',1) else ''
def qdma(blk,m0base,tag):
    row=BL[blk]['row']; its=[]
    for hf in range(2):
        its.append(("multi",[f"s_add_u32 m0, s24, {m0base+hf*4096}","s_nop 0"]))
        for i in range(4): its.append(('vm',f"buffer_load_dwordx4 v{DK+i}, s[4:7], {row if hf==0 else HI[row]} offen offset:{i*1024}{NTQ} lds",tag))
    return its
def qread(blk,j,off):
    q=BL[blk]['q']; return f"ds_read_b128 {R(q[0],q[1]+4*j,4)}, v{TMP+j} offset:{off}"
init+=dma('K',0,0,'K0',None)+qdma('A1',131072,'QA')+qdma('B1',98304,'QB')
if OPT.get('pf',0):
    npf=OPT['pf']
    init+=[('multi',["s_getpc_b64 s[60:61]","PFL:","s_lshr_b32 s62, s2, 3","s_and_b32 s62, s62, 3","s_lshl_b32 s62, s62, 2","s_add_u32 s62, s62, s21",f"s_mul_i32 s62, s62, {npf*1024}",f"s_min_u32 s62, s62, END-PFL-{npf*1024}",
        "s_add_u32 s60, s60, s62","s_addc_u32 s61, s61, 0","v_mbcnt_lo_u32_b32 v60, -1, 0","v_mbcnt_hi_u32_b32 v60, -1, v60","v_lshlrev_b32 v60, 4, v60"])]
    for i in range(npf): init.append(('vm',f"global_load_dwordx4 v[128:131], v60, s[60:61] offset:{i*1024}",'PF'))
init+=[('vmwait',['K0']),'s_barrier',('vmwait',['QA'])]+dma('V',0,0,'V0',None)+[qread('A1',j,32768) for j in range(8)]
init+=[('vmwait',['QB'])]+dma('K',1,1,'K1',None)+[qread('B1',j,0) for j in range(8)]
g=dma('V',1,1,'V1',OPT['dma0']); g=dma('K',2,2,'K2',g)
g=dma('V',2,2,'V2',step0[0]+GB+16)
for t in range(16):
    g=step0[2*t]+GB
    w=[f'V{t}']+([f'K{t+1}'] if t<15 else ['QM'])
    barrier(g,w)
    if t+3<16:
        g=dma('K',(t+3)%8,(t+3)%4,f'K{t+3}',g+1)
        if t>0: g=dma('V',(t+3)%8,(t+3)%4,f'V{t+3}',g)
        else: dma('V',3,3,'V3',step0[1]+2)
def place(items,g,stride=1):
    for it in items:
        S.gaps[g].pre.append(it)
        if not (isinstance(it,tuple) and it[0]=='multi'): S.gaps[g].extra+=(1 if isinstance(it,tuple) else 0); g+=stride
    return g
qa,qb=OPT.get('qa2',6),OPT.get('qb2',10)
place(qdma('A2',131072,'QA2'),step0[qa]+16+(0 if qa%2 else 0))
qw=OPT.get('qaw',3)
place([('vmwait',['QA2'])]+[qread('A2',j,32768) for j in range(8)],step0[qa+qw]+16)
place(qdma('B2',131072,'QB2'),step0[qb]+16)
S.gaps[step0[14]+1].pre.append(('vmwait',['QB2']))
for j in range(8): S.gaps[step0[14]+2*j+3].pre.append(qread('B2',j,32768))
for j in range(8): S.gaps[step0[17]+16+2*j].pre.append(qload('M',('a',0),j,'QM'))
TO=[4,5,6,7,0,1,2,3]
g=step0[31]+17; barrier(g,[]); g=dma('K',TO[4],0,'MK4',g+1); dma('K',TO[5],1,'MK5',g)
for m,w,iss in ((1,['MK4'],[('K',6),('V',4)]),(2,['MK5'],[('K',7),('V',5)]),(3,['MK6','MV4'],[('V',6)]),(4,['MK7','MV5'],[('V',7)]),(5,['MV6'],[]),(6,['MV7'],[])):
    g=mst[m]; barrier(g,w); g+=1
    for k,x in iss: g=dma(k,TO[x],x%4,f'M{k}{x}',g)
last=-99
for n,fr in enumerate(frags):
    g=fr['first']-LA
    for t in fr['reads']:
        if g<0: init.append(t); continue
        gg=max(g,last)
        while len(S.gaps[gg].pre)>=2 and gg<fr['first']-4: gg+=1
        S.gaps[gg].pre.append(t); last=gg
sm=[]
def maxcalc(bl,ready,dead):
    ops=[]
    for sb,neg,t,t2 in bl:
        ops.append(f"v_max3_f32 v{t}, v{sb}, v{sb+1}, v{sb+2}")
        for i in range(3,15,2): ops.append(f"v_max3_f32 v{t}, v{t}, v{sb+i}, v{sb+i+1}")
        ops+= [f"v_max_f32 v{t}, v{t}, v{sb+15}",f"v_mov_b32 v{t2}, v{t}","s_nop 1",f"v_permlane32_swap_b32 v{t}, v{t2}",
               f"v_max_f32 v{t}, v{t}, v{t2}",f"v_mul_f32 v{neg}, s32, v{t}"]
    for o in ops: sm.append(VOp(o,ready,dead))
def smgroup(sb,neg,l,s,ready,dead,first):
    b=sb+8*s; q=[]
    F=lambda i:f"v_fma_f32 v{b+i}, v{b+i}, s20, v{neg}"
    E=lambda i:f"v_exp_f32 v{b+i}, v{b+i}"
    A=lambda i:(f"v_mov_b32 v{l}, v{b+i}" if first and s==0 and i==0 else f"v_add_f32 v{l}, v{l}, v{b+i}")
    C=lambda i:f"v_cvt_pk_bf16_f32 v{b+i//2}, v{b+i-1}, v{b+i}"
    return [F,E,A,C]
def softmax(groups):
    vals=[]
    for gr in groups:
        f=smgroup(*gr)
        for i in range(8): vals.append((f,i,gr[4],gr[5]))
    n=len(vals)
    def op(k,w): f,i,r,d=vals[k]; sm.append(VOp(f[w](i),r,d))
    op(0,0)
    for k in range(n+1):
        if k<n: op(k,1)
        if k+1<n: op(k+1,0)
        if k>=1:
            op(k-1,2)
            if vals[k-1][1]%2==1: op(k-1,3)
for u in range(32):
    A,B=SB[(u%2)*2],SB[(u%2)*2+1]; ra,rb=sdone[(u,0)]+2,sdone[(u,1)]+2
    la,lb=(LA1,LB1) if u<16 else (LA2,LB2); fi=(u%16==0)
    if fi: maxcalc([(A,NEGA,30,46),(B,NEGB,31,47)],rb,pdead[(u,0,0)])
    softmax([(A,NEGA,la,0,ra,pdead[(u,0,0)],fi),(B,NEGB,lb,0,rb,pdead[(u,1,0)],fi),
             (A,NEGA,la,1,ra,pdead[(u,0,1)],fi),(B,NEGB,lb,1,rb,pdead[(u,1,1)],fi)])
maxcalc([(SB[0],NEGA,30,46)],sdone[('m',0)]+2,pdead[('m',0,0)])
for m in range(8):
    r=sdone[('m',m)]+2
    softmax([(SB[m%4],NEGA,LA1,0,r,pdead[('m',m,0)],m==0),(SB[m%4],NEGA,LA1,1,r,pdead[('m',m,1)],False)])
S.stream(sm)
S.stream([])
def fin(l,r,mask,t):
    return [f"v_mov_b32 v{t}, v{l}","s_nop 1",f"v_permlane32_swap_b32 v{t}, v{l}",f"v_add_f32 v{t}, v{t}, v{l}",
            f"v_cmp_nlt_f32_e64 {mask}, v{t}, s30",f"v_rcp_f32 v{r}, v{t}"]
def unit(blk,d,g,r,k):
    o=BL[blk]['o']; b=o[1]+16*d+4*g; ops=[]; tmp=TMP+8*(k%2); ad=26+k%2
    ops.append(f"v_xor_b32 v{ad}, {(4*d+g)*16}, v{SWA}")
    if o[0]=='a':
        ops+=[f"v_accvgpr_read_b32 v{tmp+i}, a{b+i}" for i in range(8)]; b=tmp
    ops+=[f"v_mul_f32 v{b+i}, v{b+i}, v{r}" for i in range(8)]
    ops+=[f"v_cvt_pk_bf16_f32 v{b+i}, v{b+2*i}, v{b+2*i+1}" for i in range(4)]
    ops+=["s_nop 0",f"v_permlane32_swap_b32 v{b}, v{b+2}",f"v_permlane32_swap_b32 v{b+1}, v{b+3}"]
    ops.append(f"ds_write_b128 v{ad}, {R('v',b,4)}")
    return ops
def readback(blk):
    o=BL[blk]['o']; row=BL[blk]['row']; hi=HI[row]
    rd=[f"ds_read_b128 {R(o[0],o[1]+4*k,4)}, v{SRA} offset:{k*1024}" for k in range(8)]
    st=[f"buffer_store_dwordx4 {R(o[0],o[1]+4*k,4)}, v{DK+k%4}, s[16:19], {row if k<4 else hi} offen offset:{(k%4)*1024}{' nt' if OPT.get('nts',0) else ''}" for k in range(8)]
    return rd,st
def epi(A,B,la,lb,ma,mb,ufin,dead):
    r0=step0[ufin]+25; ops=[]
    for o in fin(la,RA,ma,28)+fin(lb,RB,mb,29): ops.append(VOp(o,r0,dead))
    r1=step0[ufin]+33; k=0
    for blk,r in ((A,RA),(B,RB)):
        for d in range(4):
            for g in (0,2):
                for o in unit(blk,d,g,r,k): ops.append(VOp(o,r1,dead))
                k+=1
        ops.append(VOp("RB "+blk,r1,dead)); ops[-1].cost=0
    return ops
e1=epi('A1','B1',LA1,LB1,'s[40:41]','s[42:43]',15,step0[30]-40); S.stream(e1)
e2=epi('A2','B2',LA2,LB2,'s[44:45]','s[46:47]',31,10**6); S.stream(e2)
left=S.run(cap=OPT['cap'],soft=OPT['soft'])
assert all(len(x)==0 for x in left[:3]),[len(x) for x in left]
left2=[o.text for o in left[3]]
assert not any(x.startswith("v_rcp") for x in left2)
busy=-1; tailst=[]
for g in range(NG):
    v=S.gaps[g].valu; keep=[]
    for x in v:
        if x.startswith('ds_write'):
            assert g+1>busy,(g,busy)
            if g+1<NG: S.gaps[g+1].pre.append(x)
            else: left2.insert(0,x)
        elif x.startswith('RB'):
            rd,st=readback(x.split()[1])
            if g+2+8+4+OPT.get('stsp',6)*8<NG:
                for k in range(8): S.gaps[g+2+k].pre.append(rd[k])
                busy=g+2+7
                for k in range(8): S.gaps[g+14+OPT.get('stsp',6)*k].pre.append(('vm',st[k],'st'))
            else: left2.insert(0,x)
        else: keep.append(x)
    S.gaps[g].valu=keep
def expand(ops):
    o=[]
    for x in ops:
        if x.startswith('RB'):
            rd,st=readback(x.split()[1]); o+=rd
            for k in range(8): o+=[f"s_waitcnt lgkmcnt({7-k})",st[k]]
        else: o.append(x)
    return o
STG=[0]+[step0[u] for u in ((0,1,2,3,4,5,6,7) if OPT['stamp']==2 else (0,2,4,8,16,24,31))]+([] if OPT['stamp']==2 else [mst[0],mst[4],NG-1])
def stamp(i): return [f"s_memtime s[{72+2*i}:{73+2*i}]","s_waitcnt lgkmcnt(0)"]
if OPT['stamp']:
    for i,gg in enumerate(STG): S.gaps[gg].pre.append(('multi',stamp(i+1)))
    if OPT['stamp']==2:
        k=init.index('s_barrier'); init[k:k+1]=[('multi',stamp(10)),'s_barrier',('multi',stamp(11))]; init.insert(0,('multi',stamp(9+3)))
        STG=STG+[0,0,0]
body,vm=linearize(S.gaps,init)
P=f"""s_cmp_ge_u32 s2, 256
s_cbranch_scc1 END
s_load_dwordx4 s[36:39], s[0:1], 0
s_load_dwordx4 s[52:55], s[0:1], 16
v_and_b32 v3, 63, v0
v_lshrrev_b32 v4, 6, v0
s_nop 0
v_readfirstlane_b32 s21, v4
s_lshr_b32 s3, s2, 4
s_lshl_b32 s3, s3, 3
s_and_b32 s34, s2, 7
s_add_u32 s3, s3, s34
s_lshr_b32 s34, s2, 3
s_and_b32 s34, s34, 1
s_mul_i32 s35, s3, 294912
s_mul_i32 s34, s34, 147456
s_add_u32 s35, s35, s34
s_lshl_b32 s3, s3, 17
s_lshl_b32 s22, s21, 12
s_lshl_b32 s24, s21, 13
s_lshl_b32 s25, s21, 14
s_add_u32 s26, s25, 8192
s_add_u32 s27, s25, 65536
s_add_u32 s28, s27, 8192
s_lshr_b32 s29, s21, 1
s_lshl_b32 s29, s29, 13
s_add_u32 s29, s29, 131072
s_and_b32 s31, s21, 1
s_add_u32 s68, s25, 4096
s_add_u32 s69, s26, 4096
s_add_u32 s70, s27, 4096
s_add_u32 s71, s28, 4096
s_add_u32 s59, s29, 4096
s_mov_b32 s20, 0x3e0293ee
s_mov_b32 s32, 0xbe0293ee
s_mov_b32 s30, 0x4e800000
v_and_b32 v5, 31, v3
v_lshrrev_b32 v6, 5, v3
v_and_b32 v7, 15, v3
v_lshrrev_b32 v8, 4, v3
v_lshlrev_b32 v{VQ}, 8, v5
v_lshl_add_u32 v{VQ}, v6, 4, v{VQ}
v_xor_b32 v9, v7, v8
v_lshlrev_b32 v9, 4, v9
v_lshl_add_u32 v{DK}, v8, 8, v9
v_xor_b32 v{DK+1}, 64, v{DK}
v_xor_b32 v{DK+2}, 0x80, v{DK}
v_xor_b32 v{DK+3}, 0xc0, v{DK}
v_lshlrev_b32 v9, 2, v8
v_xor_b32 v9, v7, v9
v_lshlrev_b32 v9, 4, v9
v_lshl_add_u32 v{DV}, v8, 8, v9
s_waitcnt lgkmcnt(0)
s_add_u32 s4, s36, s35
s_addc_u32 s5, s37, 0
s_mov_b32 s6, 147456
s_mov_b32 s7, 0x00020000
s_add_u32 s8, s38, s3
s_addc_u32 s9, s39, 0
s_mov_b32 s10, 131072
s_mov_b32 s11, 0x00020000
s_add_u32 s12, s52, s3
s_addc_u32 s13, s53, 0
s_mov_b32 s14, 131072
s_mov_b32 s15, 0x00020000
s_add_u32 s16, s54, s35
s_addc_u32 s17, s55, 0
s_mov_b32 s18, 147456
s_mov_b32 s19, 0x00020000""".split('\n')
A2=f"""v_xor_b32 v28, v6, v7
v_lshlrev_b32 v28, 4, v28
v_lshl_add_u32 v28, v5, 8, v28
v_lshrrev_b32 v29, 2, v7
v_and_b32 v30, 3, v7
v_lshl_add_u32 v31, v6, 2, v29
v_lshlrev_b32 v31, 8, v31
v_and_b32 v46, 1, v8
v_lshlrev_b32 v46, 5, v46
v_add_u32 v31, v31, v46
v_lshrrev_b32 v46, 1, v30
v_lshl_add_u32 v31, v46, 4, v31
v_and_b32 v46, 1, v30
v_lshl_add_u32 v31, v46, 3, v31
v_add_u32 v31, 0x10000, v31
v_lshlrev_b32 v29, 6, v29
s_lshl_b32 s34, s21, 13
s_add_u32 s34, s34, 131072
v_add_u32 v{SWA}, s34, v28
v_lshlrev_b32 v46, 4, v3
v_add_u32 v{SRA}, s34, v46
s_add_u32 s68, s25, 4096
s_add_u32 s69, s26, 4096
s_add_u32 s70, s27, 4096
s_add_u32 s71, s28, 4096
s_lshl_b32 s34, s31, 13""".split('\n')
for d in range(4):
    A2+= [f"v_xor_b32 v46, {d*64}, v29",f"v_add_u32 v47, v31, v46",f"v_add_u32 v{MVA+d}, s34, v47"]
    A2.append(f"v_mov_b32 v{48+d}, v47")
for j in range(8): A2+=[f"v_xor_b32 v{52+j}, {j*32}, v28",f"v_add_u32 v{MKA+j}, s34, v{52+j}"]
A2+=[f"v_mov_b32 v{KA+j}, v{52+j}" for j in range(8)]+[f"v_mov_b32 v{VA+d}, v{48+d}" for d in range(4)]
A2+=[f"s_sub_u32 s34, 32768, 0",f"v_subrev_u32 v46, s34, v{SWA}"]+[f"v_xor_b32 v{TMP+j}, {j*32}, v46" for j in range(8)]
k=next(i for i,l in enumerate(body) if l.startswith('s_waitcnt vmcnt'))
body=body[:k]+A2+body[k:]
T=["s_nop 7","s_nop 3"]
h=len(left2)//2
while h<len(left2) and not (h==0 or left2[h-1].startswith(('ds_write','RB'))): h+=1
T+=[f"v_mov_b32 v28, v{LA1}","s_nop 1",f"v_permlane32_swap_b32 v28, v{LA1}",f"v_add_f32 v28, v28, v{LA1}",f"v_mov_b32 v29, v{NEGA}",
    "v_mbcnt_lo_u32_b32 v3, -1, 0","v_mbcnt_hi_u32_b32 v3, -1, v3","v_lshlrev_b32 v30, 3, v3","s_lshl_b32 s34, s21, 9","s_add_u32 s34, s34, 65536","s_xor_b32 s35, s34, 512",
    "v_add_u32 v31, s35, v30","v_add_u32 v30, s34, v30","v_lshlrev_b32 v46, 4, v3","s_lshl_b32 s34, s21, 13",
    "s_xor_b32 s35, s34, 8192","v_add_u32 v47, s35, v46","v_add_u32 v46, s34, v46","ds_write_b64 v30, v[28:29]",
    "s_cmp_eq_u32 s31, 0","s_cbranch_scc0 PAR1"]
for p in (0,1):
    if p: T.append("PAR1:")
    for k in range(8): T.append(f"ds_write_b128 v46, {R('a',128+32*(1-p)+4*k,4)} offset:{k*1024}")
    for k in range(32): T.append(f"v_accvgpr_read_b32 v{96+k}, a{128+32*p+k}")
    if not p: T.append("s_branch PARJ")
T+=["PARJ:"]+expand(left2[:h])+["s_waitcnt lgkmcnt(0)","s_barrier","ds_read_b64 v[2:3], v31"]
for k in range(8): T.append(f"ds_read_b128 {R('v',64+4*k,4)}, v47 offset:{k*1024}")
T+=expand(left2[h:])
T+=["s_waitcnt lgkmcnt(0)",f"v_mov_b32 v{OOB}, 0x80000000","v_cmp_nlt_f32_e64 s[48:49], v28, s30","v_cmp_nlt_f32_e64 s[50:51], v2, s30","v_min_f32 v4, v29, v3",
    "v_sub_f32 v5, v4, v29","v_sub_f32 v6, v4, v3","v_exp_f32 v5, v5","v_exp_f32 v6, v6","s_or_b64 s[48:49], s[48:49], s[50:51]",
    "v_mul_f32 v7, v28, v5","v_fma_f32 v7, v2, v6, v7","v_rcp_f32 v7, v7","s_lshl_b32 s34, s31, 7",f"v_add_u32 v8, s34, v{VQ}",
    "v_mul_f32 v5, v5, v7","v_mul_f32 v6, v6, v7",f"v_cndmask_b32_e64 v8, v8, v{OOB}, s[48:49]"]
for k in range(32): T.append(f"v_mul_f32 v{96+k}, v{96+k}, v5")
T.append("s_waitcnt lgkmcnt(0)")
for k in range(32): T.append(f"v_fma_f32 v{96+k}, v{64+k}, v6, v{96+k}")
for un in range(4):
    b=96+8*un
    T+=[f"v_cvt_pk_bf16_f32 v{b+i}, v{b+2*i}, v{b+2*i+1}" for i in range(4)]
    T+=["s_nop 1",f"v_permlane32_swap_b32 v{b}, v{b+2}",f"v_permlane32_swap_b32 v{b+1}, v{b+3}",
        f"buffer_store_dwordx4 {R('v',b,4)}, v8, s[16:19], s29 offen offset:{(un//2)*64+(un%2)*32}"]
T+=["s_cmp_eq_u32 s31, 0","s_cbranch_scc1 KEEPM","s_mov_b64 s[48:49], 0","KEEPM:",
    "s_or_b64 s[50:51], s[40:41], s[42:43]","s_or_b64 s[50:51], s[50:51], s[44:45]","s_or_b64 s[50:51], s[50:51], s[46:47]",
    "s_or_b64 s[50:51], s[50:51], s[48:49]","s_cbranch_scc0 END"]
W=["s_waitcnt vmcnt(0)","s_mov_b32 s56, 0","v_mbcnt_lo_u32_b32 v3, -1, 0","v_mbcnt_hi_u32_b32 v3, -1, v3","v_and_b32 v4, 31, v3","v_lshrrev_b32 v5, 5, v3",
   "v_lshlrev_b32 v4, 1, v4","v_lshl_add_u32 v8, v5, 10, v4","SLOOP:","s_cmp_eq_u64 s[40:41], 0","s_cbranch_scc1 SNEXT"]
W+=[f"buffer_load_dwordx4 {R('v',128+4*j,4)}, v{VQ}, s[4:7], s25 offen offset:{j*32}" for j in range(8)]
def sqk():
    o=[f"buffer_load_dwordx4 {R('v',160+4*j,4)}, v{VQ}, s[8:11], s57 offen offset:{j*32}" for j in range(8)]
    o.append("s_waitcnt vmcnt(0)")
    o+=[f"{MF} v[64:79], {R('v',160+4*j,4)}, {R('v',128+4*j,4)}, {'0' if j==0 else 'v[64:79]'}" for j in range(8)]
    return o+["s_nop 7","s_nop 7"]
W+=["v_mov_b32 v10, 0xff800000","s_mov_b32 s57, 0","SMAX:"]+sqk()
W+=[f"v_max_f32 v10, v10, v{64+i}" for i in range(16)]
W+=["s_add_u32 s57, s57, 8192","s_cmp_lt_u32 s57, 131072","s_cbranch_scc1 SMAX",
    "v_mov_b32 v11, v10","s_nop 1","v_permlane32_swap_b32 v10, v11","v_max_f32 v10, v10, v11","v_mul_f32 v10, s32, v10","v_mov_b32 v12, 0"]
W+=[f"v_mov_b32 v{192+i}, 0" for i in range(64)]
W+=["s_mov_b32 s57, 0","SPV:"]+sqk()
for i in range(16): W+=[f"v_fma_f32 v{64+i}, v{64+i}, s20, v10",f"v_exp_f32 v{64+i}, v{64+i}","s_nop 0",f"v_add_f32 v12, v12, v{64+i}"]
W+=[f"v_cvt_pk_bf16_f32 v{80+i}, v{64+2*i}, v{65+2*i}" for i in range(8)]
for s in range(2):
    W.append(f"s_add_u32 s58, s57, {s*4096}")
    for d in range(4):
        W+=[f"buffer_load_ushort v{96+8*d+i}, v8, s[12:15], s58 offen offset:{(8*(i//4)+i%4)*256+d*64}" for i in range(8)]
    W.append("s_waitcnt vmcnt(0)")
    W+=[f"v_lshl_or_b32 v{160+i}, v{97+2*i}, 16, v{96+2*i}" for i in range(16)]
    W.append("s_nop 1")
    W+=[f"{MF} {R('v',192+16*d,16)}, {R('v',160+4*d,4)}, {R('v',80+4*s,4)}, {R('v',192+16*d,16)}" for d in range(4)]
    W+=["s_nop 7","s_nop 7"]
W+=["s_add_u32 s57, s57, 8192","s_cmp_lt_u32 s57, 131072","s_cbranch_scc1 SPV",
    "v_mov_b32 v11, v12","s_nop 1","v_permlane32_swap_b32 v11, v12","v_add_f32 v11, v11, v12","v_rcp_f32 v11, v11",
    f"v_cndmask_b32_e64 v13, v{OOB}, v{VQ}, s[40:41]"]
for d in range(4):
    for g in (0,2):
        b=192+16*d+4*g
        W+=[f"v_mul_f32 v{b+i}, v{b+i}, v11" for i in range(8)]
        W+=[f"v_cvt_pk_bf16_f32 v{b+i}, v{b+2*i}, v{b+2*i+1}" for i in range(4)]
        W+=["s_nop 1",f"v_permlane32_swap_b32 v{b}, v{b+2}",f"v_permlane32_swap_b32 v{b+1}, v{b+3}",
            f"buffer_store_dwordx4 {R('v',b,4)}, v13, s[16:19], s25 offen offset:{d*64+g*16}"]
W+=["s_waitcnt vmcnt(0)","SNEXT:"]
for i in range(4): W+=[f"s_mov_b64 s[{40+2*i}:{41+2*i}], s[{42+2*i}:{43+2*i}]",f"s_mov_b32 s{25+i}, s{26+i}"]
W+=["s_add_u32 s56, s56, 1","s_cmp_lt_u32 s56, 5","s_cbranch_scc1 SLOOP"]
allc=P+body+T+W
if OPT['stamp']:
    n=len(STG)+1
    E=stamp(n)+["s_waitcnt vmcnt(0)"]+stamp(n+1)+["s_memrealtime s[60:61]","s_load_dwordx2 s[64:65], s[0:1], 40","s_waitcnt lgkmcnt(0)","s_mov_b32 s66, 0x100000","s_mov_b32 s67, 0x00020000",
       "s_lshl_b32 s63, s2, 2","s_add_u32 s63, s63, s21","s_lshl_b32 s63, s63, 7","v_mov_b32 v46, s63"]
    for i in range(1,n+2): E+=[f"s_sub_u32 s62, s{72+2*i}, s72","v_mov_b32 v47, s62",f"buffer_store_dword v47, v46, s[64:67], 0 offen offset:{4*(i-1)}"]
    E+=["s_getreg_b32 s62, hwreg(HW_REG_XCC_ID, 0, 4)","s_and_b32 s60, s2, 7","s_sub_u32 s62, s62, s60","v_mov_b32 v47, s62",f"buffer_store_dword v47, v46, s[64:67], 0 offen offset:{4*(n+3)}","s_memrealtime s[60:61]","s_waitcnt lgkmcnt(0)","s_sub_u32 s62, s60, s58","v_mov_b32 v47, s62",f"buffer_store_dword v47, v46, s[64:67], 0 offen offset:{4*(n+1)}",
        "v_mov_b32 v47, s58",f"buffer_store_dword v47, v46, s[64:67], 0 offen offset:{4*(n+2)}"]
    E+=["s_cmp_eq_u32 s2, 77","s_cbranch_scc0 NODBG","s_cmp_eq_u32 s21, 0","s_cbranch_scc0 NODBG","s_load_dwordx2 s[64:65], s[0:1], 32","s_waitcnt lgkmcnt(0)","s_mov_b32 s66, 256","v_mov_b32 v46, 0"]
    for i in range(1,n+2): E+=[f"s_sub_u32 s62, s{72+2*i}, s72","v_mov_b32 v47, s62",f"buffer_store_dword v47, v46, s[64:67], 0 offen offset:{4*(i-1)}","s_nop 1"]
    E+=["s_sub_u32 s62, s60, s58","v_mov_b32 v47, s62",f"buffer_store_dword v47, v46, s[64:67], 0 offen offset:{4*(n+1)}","NODBG:"]
    k=T.index("KEEPM:")
    allc=P[:2]+["s_memrealtime s[58:59]"]+stamp(0)+P[2:]+body+T[:k+1]+E+T[k+1:]+W
errs=check_hazards(allc)
for e in errs[:20]: print(e,file=sys.stderr)
print("hazards",len(errs),"lines",len(allc),"gaps",NG,"left2",len(left2),file=sys.stderr)
import collections
cost=0
for g in S.gaps:
    c=sum(8 if x.split()[0] in TRANS else 4 for x in g.valu); n=len(g.pre)+g.extra
    cost+=max(32,8+c+ (0 if n<=1 else 4*(n-1)))
print("est cycles",cost,file=sys.stderr)
hdr=open('cdna_kernels/'+NAME+'.s.ref').read().split('\n')
o=[]
for l in hdr:
    if l.startswith('; @launch'): o.append('; @launch grid=(256,1,1) block=(256,1,1) lds=163840')
    else: o.append(l)
    if l.startswith(NAME+'_kernel:'): break
o+=[('' if l.endswith(':') else '    ')+l for l in allc]
o+=["END:","s_endpgm",'.section .rodata,"a"','.p2align 6',f".amdhsa_kernel {NAME}_kernel","  .amdhsa_next_free_vgpr 512","  .amdhsa_next_free_sgpr 102",
"  .amdhsa_accum_offset 256","  .amdhsa_group_segment_fixed_size 0","  .amdhsa_kernarg_size 48","  .amdhsa_user_sgpr_count 2",
"  .amdhsa_user_sgpr_kernarg_segment_ptr 1","  .amdhsa_system_sgpr_workgroup_id_x 1",".end_amdhsa_kernel",""]
open(sys.argv[1],'w').write('\n'.join(o))
```

```python
import sys,os
sys.path.insert(0,os.path.dirname(os.path.abspath(__file__)))
from gen_core import *
OPT=dict(LA=7,GB=2,soft=24,cap=22.0,stamp=0,dma0=4,ntk1=0,ntk2=0,nts=1,ntq=0,pf=4)
for a in sys.argv[2:]:
    k,v=a.split('='); OPT[k]=float(v) if '.' in v else int(v)
LA=OPT['LA']; GB=OPT['GB']
NAME='standalone__gqa_softmax__near_ridge'
def R(k,b,n): return f"{k}[{b}:{b+n-1}]"
MF='v_mfma_f32_32x32x16_bf16'
VQ,KA,VA,DK,DV,OOB=1,2,10,14,18,9
LA1,LB1,NEGA,NEGB,RA,RB=20,21,22,23,24,25
MKA,MVA,LA2,LB2,TMP=32,40,44,45,48
SWA,SRA=19,0
SB=[64,80,96,112]
BL={'A1':dict(q=('a',0),o=('a',128),row='s25'),'B1':dict(q=('a',32),o=('a',192),row='s26'),
    'A2':dict(q=('a',96),o=('v',128),row='s27'),'B2':dict(q=('a',32),o=('v',192),row='s28'),
    'M':dict(q=('a',0),o=('a',128),row='s29')}
STM={0:'',1:' nt',2:' sc0 sc1',3:' sc0 sc1 nt',4:' sc1',5:' sc1 nt'}[OPT.get('nts',1)]
HI={'s25':'s68','s26':'s69','s27':'s70','s28':'s71','s29':'s59'}
S=Sched(); frags=[]
def newfrag(kind,texts):
    n=len(frags); b=64+4*(n%8); frags.append(dict(reads=[t(b) for t in texts],first=len(S.gaps),b=b)); return b
def kfrag(j,slot,half,mini):
    a=(MKA if mini else KA)+j; off=slot*16384+half*8192
    return newfrag('K',[lambda b:f"ds_read_b128 {R('a',b,4)}, v{a} offset:{off}"])
def vfrag(s,d,slot,half,mini):
    a=(MVA if mini else VA)+d
    return newfrag('V',[(lambda b,rd=rd:f"ds_read_b64_tr_b16 {R('a',b+2*rd,2)}, v{a} offset:{slot*16384+(32*half+16*s+8*rd)*256}") for rd in (0,1)])
def qk(blk,sb,j,f):
    q=BL[blk]['q']; c='0' if j==0 else R('v',sb,16)
    return S.mfma(f"{MF} {R('v',sb,16)}, {R('a',f,4)}, {R(q[0],q[1]+4*j,4)}, {c}")
def pv(blk,sb,s,d,f,first):
    o=BL[blk]['o']; od=R(o[0],o[1]+16*d,16); c='0' if first else od
    return S.mfma(f"{MF} {od}, {R('a',f,4)}, {R('v',sb+8*s,4)}, {c}")
step0={}; sdone={}; pdead={}
def names(u): return ('A1','B1') if u<16 else ('A2','B2')
def qk_phase(u):
    A,B=names(u); t=u//2
    for j in range(8):
        f=kfrag(j,t%4,u%2,False)
        ga=qk(A,SB[(u%2)*2],j,f); gb=qk(B,SB[(u%2)*2+1],j,f)
    sdone[(u,0)]=ga; sdone[(u,1)]=gb
def pv_phase(u):
    A,B=names(u); t=u//2
    for s in range(2):
        pdead[(u,0,s)]=len(S.gaps)-2; pdead[(u,1,s)]=len(S.gaps)-1
        for d in range(4):
            f=vfrag(s,d,t%4,u%2,False); first=(u%16==0 and s==0)
            pv(A,SB[(u%2)*2],s,d,f,first); pv(B,SB[(u%2)*2+1],s,d,f,first)
step0[-1]=0; qk_phase(0)
for u in range(31):
    step0[u]=len(S.gaps); qk_phase(u+1); pv_phase(u)
step0[31]=len(S.gaps)
for j in range(8):
    f=kfrag(j,0,0,True); ga=qk('M',SB[0],j,f)
    f=kfrag(j,1,0,True); gb=qk('M',SB[1],j,f)
sdone[('m',0)]=ga; sdone[('m',1)]=gb
pv_phase(31)
mst={}
for m in range(8):
    mst[m]=len(S.gaps)
    for i in range(8):
        if m+2<8:
            f=kfrag(i,(m+2)%4,0,True); g=qk('M',SB[(m+2)%4],i,f); sdone[('m',m+2)]=g
        s,d=i//4,i%4
        if d==0: pdead[('m',m,s)]=len(S.gaps)-2
        f=vfrag(s,d,m%4,0,True); pv('M',SB[m%4],s,d,f,m==0 and s==0)
NG=len(S.gaps)
init=[]
def dma(kind,tile,slot,tag,g,st=1):
    so='s23' if kind=='K' else 's33'; base=slot*16384+(0 if kind=='K' else 65536)
    srd='s[8:11]' if kind=='K' else 's[12:15]'
    its=[]
    for i in range(4):
        vo=DK+i if kind=='K' else DV
        first=(not tag.startswith('M')) and int(tag[1:])<8
        nt=' nt' if OPT.get('ntk1' if first else 'ntk2',0) else ''
        t=f"buffer_load_dwordx4 v{vo}, {srd}, {so} offen offset:{i*1024}{nt} lds"
        its.append(('vm',t,tag))
    hdr=('multi',[f"s_add_u32 m0, s22, {base}",f"s_add_u32 {so}, s22, {tile*16384}"])
    if g is None: return [hdr]+its
    S.gaps[g].pre.append(hdr); S.gaps[g].extra+=1
    for i,it in enumerate(its): S.gaps[g+st*(1+i)].pre.append(it)
    return g+st*5
def barrier(g,waits):
    if waits: S.gaps[g-1].pre.append(('vmwait',waits))
    S.gaps[g].pre.append('s_barrier')
def qload(blk,dst,j,tag):
    if OPT.get('exp')==2: return ('vm',f"buffer_load_dwordx4 {R(dst[0],dst[1]+4*j,4)}, v{DK+j%4}, s[4:7], {BL[blk]['row'] if j<4 else HI[BL[blk]['row']]} offen offset:{(j%4)*1024}{' nt' if OPT.get('ntq',0) else ''}",tag)
    return ('vm',f"buffer_load_dwordx4 {R(dst[0],dst[1]+4*j,4)}, v{VQ}, s[4:7], {BL[blk]['row']} offen offset:{j*32}{' nt' if OPT.get('ntq',0) else ''}",tag)
NTQ=' nt' if OPT.get('ntq',0) else ''
def qdma(blk,m0base,tag):
    row=BL[blk]['row']; its=[]
    for hf in range(2):
        its.append(("multi",[f"s_add_u32 m0, s24, {m0base+hf*4096}","s_nop 0"]))
        for i in range(4): its.append(('vm',f"buffer_load_dwordx4 v{DK+i}, s[4:7], {row if hf==0 else HI[row]} offen offset:{i*1024}{NTQ} lds",tag))
    return its
def qread(blk,j,off):
    q=BL[blk]['q']; return f"ds_read_b128 {R(q[0],q[1]+4*j,4)}, v{TMP+j} offset:{off}"
init+=dma('K',0,0,'K0',None)+qdma('A1',131072,'QA')+qdma('B1',98304,'QB')
if OPT.get('pf',0):
    npf=OPT['pf']
    init+=[('multi',["s_getpc_b64 s[60:61]","PFL:","s_lshr_b32 s62, s2, 3","s_and_b32 s62, s62, 3","s_lshl_b32 s62, s62, 2","s_add_u32 s62, s62, s21",f"s_mul_i32 s62, s62, {npf*1024}",f"s_min_u32 s62, s62, END-PFL-{npf*1024}",
        "s_add_u32 s60, s60, s62","s_addc_u32 s61, s61, 0","v_mbcnt_lo_u32_b32 v60, -1, 0","v_mbcnt_hi_u32_b32 v60, -1, v60","v_lshlrev_b32 v60, 4, v60"])]
    for i in range(npf): init.append(('vm',f"global_load_dwordx4 v[128:131], v60, s[60:61] offset:{i*1024}",'PF'))
init+=[('vmwait',['K0']),'s_barrier',('vmwait',['QA'])]+dma('V',0,0,'V0',None)+[qread('A1',j,32768) for j in range(8)]
init+=[('vmwait',['QB'])]+dma('K',1,1,'K1',None)+[qread('B1',j,0) for j in range(8)]
g=dma('V',1,1,'V1',OPT['dma0']); g=dma('K',2,2,'K2',g)
g=dma('V',2,2,'V2',step0[0]+16,2)
for t in range(16):
    g=step0[2*t]+GB
    w=[f'V{t}']+([f'K{t+1}'] if t<15 else ['QM'])
    barrier(g,w)
    if t+3<16:
        dma('K',(t+3)%8,(t+3)%4,f'K{t+3}',step0[2*t]+GB+(2 if GB%2==0 else 1),2)
        dma('V',(t+3)%8,(t+3)%4,f'V{t+3}',step0[2*t+1]+2,2)
def place(items,g,stride=1):
    for it in items:
        S.gaps[g].pre.append(it)
        if not (isinstance(it,tuple) and it[0]=='multi'): g+=stride
    return g
qa,qb=OPT.get('qa2',6),OPT.get('qb2',10)
place(qdma('A2',131072,'QA2'),step0[qa]+16+(0 if qa%2 else 0))
qw=OPT.get('qaw',3)
place([('vmwait',['QA2'])]+[qread('A2',j,32768) for j in range(8)],step0[qa+qw]+16)
place(qdma('B2',131072,'QB2'),step0[qb]+16)
S.gaps[step0[14]+1].pre.append(('vmwait',['QB2']))
for j in range(8): S.gaps[step0[14]+2*j+3].pre.append(qread('B2',j,32768))
place(qdma('M',131072,'QM'),step0[15]+16)
place([('vmwait',['QM'])]+[qread('M',j,32768) for j in range(8)],step0[17]+GB+2)
TO=[4,5,6,7,0,1,2,3]
g=step0[31]+17; barrier(g,[]); g=dma('K',TO[4],0,'MK4',g+1); dma('K',TO[5],1,'MK5',g)
for m,w,iss in ((1,['MK4'],[('K',6),('V',4)]),(2,['MK5'],[('K',7),('V',5)]),(3,['MK6','MV4'],[('V',6)]),(4,['MK7','MV5'],[('V',7)]),(5,['MV6'],[]),(6,['MV7'],[])):
    g=mst[m]; barrier(g,w); g+=1
    for k,x in iss: g=dma(k,TO[x],x%4,f'M{k}{x}',g)
last=-99
for n,fr in enumerate(frags):
    g=fr['first']-(LA if fr['first']>=step0[31]-8 else OPT.get('LAm',LA))
    for t in fr['reads']:
        if g<0: init.append(t); continue
        gg=max(g,last)
        while len(S.gaps[gg].pre)>=2 and gg<fr['first']-4: gg+=1
        S.gaps[gg].pre.append(t); last=gg
sm=[]; PACE=[0]
def maxcalc(bl,ready,dead):
    ops=[]
    for sb,neg,t,t2 in bl:
        ops.append(f"v_max3_f32 v{t}, v{sb}, v{sb+1}, v{sb+2}")
        for i in range(3,15,2): ops.append(f"v_max3_f32 v{t}, v{t}, v{sb+i}, v{sb+i+1}")
        ops+= [f"v_max_f32 v{t}, v{t}, v{sb+15}",f"v_mov_b32 v{t2}, v{t}","s_nop 1",f"v_permlane32_swap_b32 v{t}, v{t2}",
               f"v_max_f32 v{t}, v{t}, v{t2}",f"v_mul_f32 v{neg}, s32, v{t}"]
    for o in ops: sm.append(VOp(o,ready,dead))
    PACE[0]=max(PACE[0],ready)+(len(ops)*4+19)//20
def softmax(groups):
    vals=[]
    for sb,neg,l,s,ready,dead,first in groups:
        for i in range(8): vals.append((sb+8*s,i,neg,l,ready,dead,first and s==0 and i==0))
    n=len(vals); rr=[]
    for v in vals:
        r=max(PACE[0],v[4]) if OPT.get('pace',1) else v[4]
        r=min(r,v[5]-1); rr.append(r); PACE[0]=r+1
    def op(k,w,kk):
        b,i,neg,l,r,d,fi=vals[k]; r=rr[min(kk,n-1)]
        t=[f"v_fma_f32 v{b+i}, v{b+i}, s20, v{neg}",f"v_exp_f32 v{b+i}, v{b+i}",
           f"v_mov_b32 v{l}, v{b+i}" if fi else f"v_add_f32 v{l}, v{l}, v{b+i}",f"v_cvt_pk_bf16_f32 v{b+i//2}, v{b+i-1}, v{b+i}"][w]
        sm.append(VOp(t,r,min(d,r+OPT.get('slk',0)) if OPT.get('pace',1) else d))
    op(0,0,0)
    for k in range(n+1):
        if k<n: op(k,1,k)
        if k+1<n: op(k+1,0,k if vals[k+1][4]<=rr[k] else k+1)
        if k>=1:
            op(k-1,2,k)
            if vals[k-1][1]%2==1: op(k-1,3,k)
for u in range(32):
    A,B=SB[(u%2)*2],SB[(u%2)*2+1]; ra,rb=sdone[(u,0)]+2,sdone[(u,1)]+2
    la,lb=(LA1,LB1) if u<16 else (LA2,LB2); fi=(u%16==0)
    if fi: maxcalc([(A,NEGA,28,29),(B,NEGB,30,31)] if u==0 else [(A,NEGA,30,46),(B,NEGB,31,47)],rb,pdead[(u,0,0)])
    softmax([(A,NEGA,la,0,ra,pdead[(u,0,0)],fi),(B,NEGB,lb,0,rb,pdead[(u,1,0)],fi),
             (A,NEGA,la,1,ra,pdead[(u,0,1)],fi),(B,NEGB,lb,1,rb,pdead[(u,1,1)],fi)])
maxcalc([(SB[0],NEGA,56,57)],sdone[('m',0)]+2,pdead[('m',0,0)])
for m in range(8):
    r=sdone[('m',m)]+2
    softmax([(SB[m%4],NEGA,LA1,0,r,pdead[('m',m,0)],m==0),(SB[m%4],NEGA,LA1,1,r,pdead[('m',m,1)],False)])
S.stream(sm)
S.stream([])
def fin(l,r,mask,t):
    return [f"v_mov_b32 v{t}, v{l}","s_nop 1",f"v_permlane32_swap_b32 v{t}, v{l}",f"v_add_f32 v{t}, v{t}, v{l}",
            f"v_cmp_nlt_f32_e64 {mask}, v{t}, s30",f"v_rcp_f32 v{r}, v{t}"]
def unit(blk,d,g,r,k):
    o=BL[blk]['o']; b=o[1]+16*d+4*g; ops=[]; tmp=TMP+8*(k%2); ad=26+k%2
    ops.append(f"v_xor_b32 v{ad}, {(4*d+g)*16}, v{SWA}")
    if o[0]=='a':
        ops+=[f"v_accvgpr_read_b32 v{tmp+i}, a{b+i}" for i in range(8)]; b=tmp
    ops+=[f"v_mul_f32 v{b+i}, v{b+i}, v{r}" for i in range(8)]
    ops+=[f"v_cvt_pk_bf16_f32 v{b+i}, v{b+2*i}, v{b+2*i+1}" for i in range(4)]
    ops+=["s_nop 0",f"v_permlane32_swap_b32 v{b}, v{b+2}",f"v_permlane32_swap_b32 v{b+1}, v{b+3}"]
    ops.append(f"ds_write_b128 v{ad}, {R('v',b,4)}")
    return ops
def readback(blk):
    o=BL[blk]['o']; row=BL[blk]['row']; hi=HI[row]
    rd=[f"ds_read_b128 {R(o[0],o[1]+4*k,4)}, v{SRA} offset:{k*1024}" for k in range(8)]
    st=[f"buffer_store_dwordx4 {R(o[0],o[1]+4*k,4)}, v{DK+k%4}, s[16:19], {row if k<4 else hi} offen offset:{(k%4)*1024}{STM}" for k in range(8)]
    return rd,st
def epi(A,B,la,lb,ma,mb,ufin,dead):
    r0=step0[ufin]+25; ops=[]
    for o in fin(la,RA,ma,28)+fin(lb,RB,mb,29): ops.append(VOp(o,r0,dead))
    r1=(step0[17]+16 if ufin==15 else step0[ufin]+33); k=0
    for blk,r in ((A,RA),(B,RB)):
        for d in range(4):
            for g in (0,2):
                for o in unit(blk,d,g,r,k): ops.append(VOp(o,r1,dead))
                k+=1
        ops.append(VOp("RB "+blk,r1,dead)); ops[-1].cost=0
    return ops
e1=epi('A1','B1',LA1,LB1,'s[40:41]','s[42:43]',15,step0[30]-40); S.stream(e1)
e2=epi('A2','B2',LA2,LB2,'s[44:45]','s[46:47]',31,10**6); S.stream(e2)
if OPT.get('cw',1):
    tmp,_=linearize(S.gaps,init,OPT.get('ly',3)); gi=-1
    for l in tmp:
        if l.startswith('v_mfma'): gi+=1
        elif l.startswith('s_waitcnt lgkm') and gi>=0: S.gaps[gi].extra+=1
n1=len(e1); r1=step0[17]+16; d1=step0[OPT.get('e1end',30)]-OPT.get('e1m',60)
for k,o in enumerate(e1):
    if k>=12: o.hard=o.dead=r1+8+(d1-r1-8)*(k+1)/n1
if OPT.get('pace2',1):
    n2=len(e2); r2=mst[0]+1; d2=NG-OPT.get('e2m',14)
    for k,o in enumerate(e2):
        if k>=12: o.hard=o.dead=r2+(d2-r2)*(k+1)/n2
left=S.run(cap=OPT['cap'],soft=OPT['soft'])
assert all(len(x)==0 for x in left[:3]),[len(x) for x in left]
left2=[o.text for o in left[3]]
assert not any(x.startswith("v_rcp") for x in left2)
busy=-1; tailst=[]
for g in range(NG):
    v=S.gaps[g].valu; keep=[]
    for x in v:
        if x.startswith('ds_write'):
            assert g+1>busy,(g,busy)
            if g+1<NG: S.gaps[g+1].pre.append(x)
            else: left2.insert(0,x)
        elif x.startswith('RB'):
            rd,st=readback(x.split()[1])
            sp=OPT.get('stsp',6) if g<mst[0] else OPT.get('stsp2',3)
            if g+2+8<NG:
                for k in range(8): S.gaps[(g+2+k) if sp>3 else (g+1+k//2)].pre.append(rd[k])
                busy=g+2+7 if sp>3 else g+4
                for k in range(8):
                    gg=g+8+k if sp==0 else g+12+sp*k
                    if gg<NG: S.gaps[gg].pre.append(('vm',st[k],'st'))
                    else: tailst.append(st[k])
            else: left2.insert(0,x)
        else: keep.append(x)
    S.gaps[g].valu=keep
def expand(ops):
    o=[]
    for x in ops:
        if x.startswith('RB'):
            rd,st=readback(x.split()[1]); o+=rd
            for k in range(8): o+=[f"s_waitcnt lgkmcnt({7-k})",st[k]]
        else: o.append(x)
    return o
STG=[0]+[step0[u] for u in ((0,1,2,3,4,5,6,7) if OPT['stamp']==2 else (14,15,16,17,18,19,20,21,22,23) if OPT['stamp']==3 else (0,2,4,8,16,24,31))]+([] if OPT['stamp'] in (2,3) else [mst[0],mst[4],NG-1])
def stamp(i): return [f"s_memtime s[{72+2*i}:{73+2*i}]","s_waitcnt lgkmcnt(0)"]
if OPT['stamp']:
    for i,gg in enumerate(STG): S.gaps[gg].pre.append(('multi',stamp(i+1)))
    if OPT['stamp']==2:
        k=init.index('s_barrier'); init[k:k+1]=[('multi',stamp(10)),'s_barrier',('multi',stamp(11))]; init.insert(0,('multi',stamp(9+3)))
        STG=STG+[0,0,0]
body,vm=linearize(S.gaps,init,OPT.get('ly',3))
P=f"""s_cmp_ge_u32 s2, 256
s_cbranch_scc1 END
s_load_dwordx4 s[36:39], s[0:1], 0
s_load_dwordx4 s[52:55], s[0:1], 16
v_and_b32 v3, 63, v0
v_lshrrev_b32 v4, 6, v0
s_nop 0
v_readfirstlane_b32 s21, v4
s_lshr_b32 s3, s2, 4
s_lshl_b32 s3, s3, 3
s_and_b32 s34, s2, 7
s_add_u32 s3, s3, s34
s_lshr_b32 s34, s2, 3
s_and_b32 s34, s34, 1
s_mul_i32 s35, s3, 294912
s_mul_i32 s34, s34, 147456
s_add_u32 s35, s35, s34
s_lshl_b32 s3, s3, 17
s_lshl_b32 s22, s21, 12
s_lshl_b32 s24, s21, 13
s_lshl_b32 s25, s21, 14
s_add_u32 s26, s25, 8192
s_add_u32 s27, s25, 65536
s_add_u32 s28, s27, 8192
s_lshr_b32 s29, s21, 1
s_lshl_b32 s29, s29, 13
s_add_u32 s29, s29, 131072
s_and_b32 s31, s21, 1
s_add_u32 s68, s25, 4096
s_add_u32 s69, s26, 4096
s_add_u32 s70, s27, 4096
s_add_u32 s71, s28, 4096
s_add_u32 s59, s29, 4096
s_mov_b32 s20, 0x3e0293ee
s_mov_b32 s32, 0xbe0293ee
s_mov_b32 s30, 0x4e800000
v_and_b32 v5, 31, v3
v_lshrrev_b32 v6, 5, v3
v_and_b32 v7, 15, v3
v_lshrrev_b32 v8, 4, v3
v_lshlrev_b32 v{VQ}, 8, v5
v_lshl_add_u32 v{VQ}, v6, 4, v{VQ}
v_xor_b32 v9, v7, v8
v_lshlrev_b32 v9, 4, v9
v_lshl_add_u32 v{DK}, v8, 8, v9
v_xor_b32 v{DK+1}, 64, v{DK}
v_xor_b32 v{DK+2}, 0x80, v{DK}
v_xor_b32 v{DK+3}, 0xc0, v{DK}
v_lshlrev_b32 v9, 2, v8
v_xor_b32 v9, v7, v9
v_lshlrev_b32 v9, 4, v9
v_lshl_add_u32 v{DV}, v8, 8, v9
s_waitcnt lgkmcnt(0)
s_add_u32 s4, s36, s35
s_addc_u32 s5, s37, 0
s_mov_b32 s6, 147456
s_mov_b32 s7, 0x00020000
s_add_u32 s8, s38, s3
s_addc_u32 s9, s39, 0
s_mov_b32 s10, 131072
s_mov_b32 s11, 0x00020000
s_add_u32 s12, s52, s3
s_addc_u32 s13, s53, 0
s_mov_b32 s14, 131072
s_mov_b32 s15, 0x00020000
s_add_u32 s16, s54, s35
s_addc_u32 s17, s55, 0
s_mov_b32 s18, 147456
s_mov_b32 s19, 0x00020000
s_mov_b32 s38, s20
s_mov_b32 s39, s20""".split('\n')
A2=f"""v_xor_b32 v28, v6, v7
v_lshlrev_b32 v28, 4, v28
v_lshl_add_u32 v28, v5, 8, v28
v_lshrrev_b32 v29, 2, v7
v_and_b32 v30, 3, v7
v_lshl_add_u32 v31, v6, 2, v29
v_lshlrev_b32 v31, 8, v31
v_and_b32 v46, 1, v8
v_lshlrev_b32 v46, 5, v46
v_add_u32 v31, v31, v46
v_lshrrev_b32 v46, 1, v30
v_lshl_add_u32 v31, v46, 4, v31
v_and_b32 v46, 1, v30
v_lshl_add_u32 v31, v46, 3, v31
v_add_u32 v31, 0x10000, v31
v_lshlrev_b32 v29, 6, v29
s_lshl_b32 s34, s21, 13
s_add_u32 s34, s34, 131072
v_add_u32 v{SWA}, s34, v28
v_lshlrev_b32 v46, 4, v3
v_add_u32 v{SRA}, s34, v46
s_add_u32 s68, s25, 4096
s_add_u32 s69, s26, 4096
s_add_u32 s70, s27, 4096
s_add_u32 s71, s28, 4096
s_lshl_b32 s34, s31, 13""".split('\n')
for d in range(4):
    A2+= [f"v_xor_b32 v46, {d*64}, v29",f"v_add_u32 v47, v31, v46",f"v_add_u32 v{MVA+d}, s34, v47"]
    A2.append(f"v_mov_b32 v{48+d}, v47")
for j in range(8): A2+=[f"v_xor_b32 v{52+j}, {j*32}, v28",f"v_add_u32 v{MKA+j}, s34, v{52+j}"]
A2+=[f"v_mov_b32 v{KA+j}, v{52+j}" for j in range(8)]+[f"v_mov_b32 v{VA+d}, v{48+d}" for d in range(4)]
A2+=[f"s_sub_u32 s34, 32768, 0",f"v_subrev_u32 v46, s34, v{SWA}"]+[f"v_xor_b32 v{TMP+j}, {j*32}, v46" for j in range(8)]
k=next(i for i,l in enumerate(body) if l.startswith('s_waitcnt vmcnt'))
body=body[:k]+A2+body[k:]
T=["s_waitcnt lgkmcnt(0)"]+tailst+["s_nop 7","s_nop 3"]
h=len(left2)//2
while h<len(left2) and not (h==0 or left2[h-1].startswith(('ds_write','RB'))): h+=1
T+=[f"v_mov_b32 v28, v{LA1}","s_nop 1",f"v_permlane32_swap_b32 v28, v{LA1}",f"v_add_f32 v28, v28, v{LA1}",f"v_mov_b32 v29, v{NEGA}",
    "v_mbcnt_lo_u32_b32 v3, -1, 0","v_mbcnt_hi_u32_b32 v3, -1, v3","v_lshlrev_b32 v30, 3, v3","s_lshl_b32 s34, s21, 9","s_add_u32 s34, s34, 65536","s_xor_b32 s35, s34, 512",
    "v_add_u32 v31, s35, v30","v_add_u32 v30, s34, v30","v_lshlrev_b32 v46, 4, v3","s_lshl_b32 s34, s21, 13",
    "s_xor_b32 s35, s34, 8192","v_add_u32 v47, s35, v46","v_add_u32 v46, s34, v46","ds_write_b64 v30, v[28:29]",
    "s_cmp_eq_u32 s31, 0","s_cbranch_scc0 PAR1"]
for p in (0,1):
    if p: T.append("PAR1:")
    for k in range(8): T.append(f"ds_write_b128 v46, {R('a',128+32*(1-p)+4*k,4)} offset:{k*1024}")
    for k in range(32): T.append(f"v_accvgpr_read_b32 v{96+k}, a{128+32*p+k}")
    if not p: T.append("s_branch PARJ")
T+=["PARJ:"]+expand(left2[:h])+["s_waitcnt lgkmcnt(0)","s_barrier","ds_read_b64 v[2:3], v31"]
for k in range(8): T.append(f"ds_read_b128 {R('v',64+4*k,4)}, v47 offset:{k*1024}")
T+=expand(left2[h:])
T+=["s_waitcnt lgkmcnt(0)",f"v_mov_b32 v{OOB}, 0x80000000","v_cmp_nlt_f32_e64 s[48:49], v28, s30","v_cmp_nlt_f32_e64 s[50:51], v2, s30","v_min_f32 v4, v29, v3",
    "v_sub_f32 v5, v4, v29","v_sub_f32 v6, v4, v3","v_exp_f32 v5, v5","v_exp_f32 v6, v6","s_or_b64 s[48:49], s[48:49], s[50:51]",
    "v_mul_f32 v7, v28, v5","v_fma_f32 v7, v2, v6, v7","v_rcp_f32 v7, v7","s_lshl_b32 s34, s31, 7",f"v_add_u32 v8, s34, v{VQ}",
    "v_mul_f32 v5, v5, v7","v_mul_f32 v6, v6, v7",f"v_cndmask_b32_e64 v8, v8, v{OOB}, s[48:49]"]
for k in range(32): T.append(f"v_mul_f32 v{96+k}, v{96+k}, v5")
T.append("s_waitcnt lgkmcnt(0)")
for k in range(32): T.append(f"v_fma_f32 v{96+k}, v{64+k}, v6, v{96+k}")
for un in range(4):
    b=96+8*un
    T+=[f"v_cvt_pk_bf16_f32 v{b+i}, v{b+2*i}, v{b+2*i+1}" for i in range(4)]
    T+=["s_nop 1",f"v_permlane32_swap_b32 v{b}, v{b+2}",f"v_permlane32_swap_b32 v{b+1}, v{b+3}",
        f"buffer_store_dwordx4 {R('v',b,4)}, v8, s[16:19], s29 offen offset:{(un//2)*64+(un%2)*32}{STM}"]
T+=["s_cmp_eq_u32 s31, 0","s_cbranch_scc1 KEEPM","s_mov_b64 s[48:49], 0","KEEPM:",
    "s_or_b64 s[50:51], s[40:41], s[42:43]","s_or_b64 s[50:51], s[50:51], s[44:45]","s_or_b64 s[50:51], s[50:51], s[46:47]",
    "s_or_b64 s[50:51], s[50:51], s[48:49]","s_cbranch_scc0 END"]
W=["s_waitcnt vmcnt(0)","s_mov_b32 s56, 0","v_mbcnt_lo_u32_b32 v3, -1, 0","v_mbcnt_hi_u32_b32 v3, -1, v3","v_and_b32 v4, 31, v3","v_lshrrev_b32 v5, 5, v3",
   "v_lshlrev_b32 v4, 1, v4","v_lshl_add_u32 v8, v5, 10, v4","SLOOP:","s_cmp_eq_u64 s[40:41], 0","s_cbranch_scc1 SNEXT"]
W+=[f"buffer_load_dwordx4 {R('v',128+4*j,4)}, v{VQ}, s[4:7], s25 offen offset:{j*32}" for j in range(8)]
def sqk():
    o=[f"buffer_load_dwordx4 {R('v',160+4*j,4)}, v{VQ}, s[8:11], s57 offen offset:{j*32}" for j in range(8)]
    o.append("s_waitcnt vmcnt(0)")
    o+=[f"{MF} v[64:79], {R('v',160+4*j,4)}, {R('v',128+4*j,4)}, {'0' if j==0 else 'v[64:79]'}" for j in range(8)]
    return o+["s_nop 7","s_nop 7"]
W+=["v_mov_b32 v10, 0xff800000","s_mov_b32 s57, 0","SMAX:"]+sqk()
W+=[f"v_max_f32 v10, v10, v{64+i}" for i in range(16)]
W+=["s_add_u32 s57, s57, 8192","s_cmp_lt_u32 s57, 131072","s_cbranch_scc1 SMAX",
    "v_mov_b32 v11, v10","s_nop 1","v_permlane32_swap_b32 v10, v11","v_max_f32 v10, v10, v11","v_mul_f32 v10, s32, v10","v_mov_b32 v12, 0"]
W+=[f"v_mov_b32 v{192+i}, 0" for i in range(64)]
W+=["s_mov_b32 s57, 0","SPV:"]+sqk()
for i in range(16): W+=[f"v_fma_f32 v{64+i}, v{64+i}, s20, v10",f"v_exp_f32 v{64+i}, v{64+i}","s_nop 0",f"v_add_f32 v12, v12, v{64+i}"]
W+=[f"v_cvt_pk_bf16_f32 v{80+i}, v{64+2*i}, v{65+2*i}" for i in range(8)]
for s in range(2):
    W.append(f"s_add_u32 s58, s57, {s*4096}")
    for d in range(4):
        W+=[f"buffer_load_ushort v{96+8*d+i}, v8, s[12:15], s58 offen offset:{(8*(i//4)+i%4)*256+d*64}" for i in range(8)]
    W.append("s_waitcnt vmcnt(0)")
    W+=[f"v_lshl_or_b32 v{160+i}, v{97+2*i}, 16, v{96+2*i}" for i in range(16)]
    W.append("s_nop 1")
    W+=[f"{MF} {R('v',192+16*d,16)}, {R('v',160+4*d,4)}, {R('v',80+4*s,4)}, {R('v',192+16*d,16)}" for d in range(4)]
    W+=["s_nop 7","s_nop 7"]
W+=["s_add_u32 s57, s57, 8192","s_cmp_lt_u32 s57, 131072","s_cbranch_scc1 SPV",
    "v_mov_b32 v11, v12","s_nop 1","v_permlane32_swap_b32 v11, v12","v_add_f32 v11, v11, v12","v_rcp_f32 v11, v11",
    f"v_cndmask_b32_e64 v13, v{OOB}, v{VQ}, s[40:41]"]
for d in range(4):
    for g in (0,2):
        b=192+16*d+4*g
        W+=[f"v_mul_f32 v{b+i}, v{b+i}, v11" for i in range(8)]
        W+=[f"v_cvt_pk_bf16_f32 v{b+i}, v{b+2*i}, v{b+2*i+1}" for i in range(4)]
        W+=["s_nop 1",f"v_permlane32_swap_b32 v{b}, v{b+2}",f"v_permlane32_swap_b32 v{b+1}, v{b+3}",
            f"buffer_store_dwordx4 {R('v',b,4)}, v13, s[16:19], s25 offen offset:{d*64+g*16}"]
W+=["s_waitcnt vmcnt(0)","SNEXT:"]
for i in range(4): W+=[f"s_mov_b64 s[{40+2*i}:{41+2*i}], s[{42+2*i}:{43+2*i}]",f"s_mov_b32 s{25+i}, s{26+i}"]
W+=["s_add_u32 s56, s56, 1","s_cmp_lt_u32 s56, 5","s_cbranch_scc1 SLOOP"]
allc=P+body+T+W
if OPT['stamp']:
    n=len(STG)+1
    E=stamp(n)+["s_waitcnt vmcnt(0)"]+stamp(n+1)+["s_memrealtime s[60:61]","s_load_dwordx2 s[64:65], s[0:1], 40","s_waitcnt lgkmcnt(0)","s_mov_b32 s66, 0x100000","s_mov_b32 s67, 0x00020000",
       "s_lshl_b32 s63, s2, 2","s_add_u32 s63, s63, s21","s_lshl_b32 s63, s63, 7","v_mov_b32 v46, s63"]
    for i in range(1,n+2): E+=[f"s_sub_u32 s62, s{72+2*i}, s72","v_mov_b32 v47, s62",f"buffer_store_dword v47, v46, s[64:67], 0 offen offset:{4*(i-1)}"]
    E+=["s_getreg_b32 s62, hwreg(HW_REG_XCC_ID, 0, 4)","s_and_b32 s60, s2, 7","s_sub_u32 s62, s62, s60","v_mov_b32 v47, s62",f"buffer_store_dword v47, v46, s[64:67], 0 offen offset:{4*(n+3)}","s_memrealtime s[60:61]","s_waitcnt lgkmcnt(0)","s_sub_u32 s62, s60, s58","v_mov_b32 v47, s62",f"buffer_store_dword v47, v46, s[64:67], 0 offen offset:{4*(n+1)}",
        "v_mov_b32 v47, s58",f"buffer_store_dword v47, v46, s[64:67], 0 offen offset:{4*(n+2)}"]
    E+=["s_cmp_eq_u32 s2, 77","s_cbranch_scc0 NODBG","s_cmp_eq_u32 s21, 0","s_cbranch_scc0 NODBG","s_load_dwordx2 s[64:65], s[0:1], 32","s_waitcnt lgkmcnt(0)","s_mov_b32 s66, 256","v_mov_b32 v46, 0"]
    for i in range(1,n+2): E+=[f"s_sub_u32 s62, s{72+2*i}, s72","v_mov_b32 v47, s62",f"buffer_store_dword v47, v46, s[64:67], 0 offen offset:{4*(i-1)}","s_nop 1"]
    E+=["s_sub_u32 s62, s60, s58","v_mov_b32 v47, s62",f"buffer_store_dword v47, v46, s[64:67], 0 offen offset:{4*(n+1)}","NODBG:"]
    k=T.index("KEEPM:")
    allc=P[:2]+["s_memrealtime s[58:59]"]+stamp(0)+P[2:]+body+T[:k+1]+E+T[k+1:]+W
errs=check_hazards(allc)
for e in errs[:20]: print(e,file=sys.stderr)
print("hazards",len(errs),"lines",len(allc),"gaps",NG,"left2",len(left2),file=sys.stderr)
import collections
cost=0
for g in S.gaps:
    c=sum(8 if x.split()[0] in TRANS else 4 for x in g.valu); n=len(g.pre)+g.extra
    cost+=max(32,8+c+ (0 if n<=1 else 4*(n-1)))
print("est cycles",cost,file=sys.stderr)
hdr=open('cdna_kernels/'+NAME+'.s.ref').read().split('\n')
o=[]
for l in hdr:
    if l.startswith('; @launch'): o.append('; @launch grid=(256,1,1) block=(256,1,1) lds=163840')
    else: o.append(l)
    if l.startswith(NAME+'_kernel:'): break
o+=[('' if l.endswith(':') else '    ')+l for l in allc]
o+=["END:","s_endpgm",'.section .rodata,"a"','.p2align 6',f".amdhsa_kernel {NAME}_kernel","  .amdhsa_next_free_vgpr 512","  .amdhsa_next_free_sgpr 102",
"  .amdhsa_accum_offset 256","  .amdhsa_group_segment_fixed_size 0","  .amdhsa_kernarg_size 48","  .amdhsa_user_sgpr_count 2",
"  .amdhsa_user_sgpr_kernarg_segment_ptr 1","  .amdhsa_system_sgpr_workgroup_id_x 1",".end_amdhsa_kernel",""]
open(sys.argv[1],'w').write('\n'.join(o))
```

```python
import sys,os
sys.path.insert(0,os.path.dirname(os.path.abspath(__file__)))
from gen_core import *
OPT=dict(LA=7,GB=2,soft=24,cap=22.0,stamp=0,dma0=4,ntk1=0,ntk2=0,nts=1,ntq=0,pf=4)
for a in sys.argv[2:]:
    k,v=a.split('='); OPT[k]=float(v) if '.' in v else int(v)
LA=OPT['LA']; GB=OPT['GB']
NAME='standalone__gqa_softmax__near_ridge'
def R(k,b,n): return f"{k}[{b}:{b+n-1}]"
MF='v_mfma_f32_32x32x16_bf16'
VQ,KA,VA,DK,DV,OOB=1,2,10,14,18,9
LA1,LB1,NEGA,NEGB,RA,RB=20,21,22,23,24,25
MKA,MVA,LA2,LB2,TMP=32,40,44,45,48
SWA,SRA=19,0
SB=[64,80,96,112]
BL={'A1':dict(q=('a',0),o=('a',128),row='s25'),'B1':dict(q=('a',32),o=('a',192),row='s26'),
    'A2':dict(q=('a',96),o=('v',128),row='s27'),'B2':dict(q=('a',32),o=('v',192),row='s28'),
    'M':dict(q=('a',0),o=('a',128),row='s29')}
STM={0:'',1:' nt',2:' sc0 sc1',3:' sc0 sc1 nt',4:' sc1',5:' sc1 nt'}[OPT.get('nts',1)]
HI={'s25':'s68','s26':'s69','s27':'s70','s28':'s71','s29':'s59'}
S=Sched(); frags=[]
def newfrag(kind,texts):
    n=len(frags); b=64+4*(n%8); frags.append(dict(reads=[t(b) for t in texts],first=len(S.gaps),b=b)); return b
def kfrag(j,slot,half,mini):
    a=(MKA if mini else KA)+j; off=slot*16384+half*8192
    return newfrag('K',[lambda b:f"ds_read_b128 {R('a',b,4)}, v{a} offset:{off}"])
def vfrag(s,d,slot,half,mini):
    a=(MVA if mini else VA)+d
    return newfrag('V',[(lambda b,rd=rd:f"ds_read_b64_tr_b16 {R('a',b+2*rd,2)}, v{a} offset:{slot*16384+(32*half+16*s+8*rd)*256}") for rd in (0,1)])
def qk(blk,sb,j,f):
    q=BL[blk]['q']; c='0' if j==0 else R('v',sb,16)
    return S.mfma(f"{MF} {R('v',sb,16)}, {R('a',f,4)}, {R(q[0],q[1]+4*j,4)}, {c}")
def pv(blk,sb,s,d,f,first):
    o=BL[blk]['o']; od=R(o[0],o[1]+16*d,16); c='0' if first else od
    return S.mfma(f"{MF} {od}, {R('a',f,4)}, {R('v',sb+8*s,4)}, {c}")
step0={}; sdone={}; pdead={}
def names(u): return ('A1','B1') if u<16 else ('A2','B2')
def qk_phase(u):
    A,B=names(u); t=u//2
    for j in range(8):
        f=kfrag(j,t%4,u%2,False)
        ga=qk(A,SB[(u%2)*2],j,f); gb=qk(B,SB[(u%2)*2+1],j,f)
    sdone[(u,0)]=ga; sdone[(u,1)]=gb
def pv_phase(u):
    A,B=names(u); t=u//2
    for s in range(2):
        pdead[(u,0,s)]=len(S.gaps)-2; pdead[(u,1,s)]=len(S.gaps)-1
        for d in range(4):
            f=vfrag(s,d,t%4,u%2,False); first=(u%16==0 and s==0)
            pv(A,SB[(u%2)*2],s,d,f,first); pv(B,SB[(u%2)*2+1],s,d,f,first)
step0[-1]=0; qk_phase(0)
for u in range(31):
    step0[u]=len(S.gaps); qk_phase(u+1); pv_phase(u)
step0[31]=len(S.gaps)
for j in range(8):
    f=kfrag(j,0,0,True); ga=qk('M',SB[0],j,f)
    f=kfrag(j,1,0,True); gb=qk('M',SB[1],j,f)
sdone[('m',0)]=ga; sdone[('m',1)]=gb
pv_phase(31)
mst={}
for m in range(8):
    mst[m]=len(S.gaps)
    for i in range(8):
        if m+2<8:
            f=kfrag(i,(m+2)%4,0,True); g=qk('M',SB[(m+2)%4],i,f); sdone[('m',m+2)]=g
        s,d=i//4,i%4
        if d==0: pdead[('m',m,s)]=len(S.gaps)-2
        f=vfrag(s,d,m%4,0,True); pv('M',SB[m%4],s,d,f,m==0 and s==0)
NG=len(S.gaps)
init=[]
def dma(kind,tile,slot,tag,g,st=1):
    so='s23' if kind=='K' else 's33'; base=slot*16384+(0 if kind=='K' else 65536)
    srd='s[8:11]' if kind=='K' else 's[12:15]'
    its=[]
    for i in range(4):
        vo=DK+i if kind=='K' else DV
        first=(not tag.startswith('M')) and int(tag[1:])<8
        nt=' nt' if OPT.get('ntk1' if first else 'ntk2',0) else ''
        t=f"buffer_load_dwordx4 v{vo}, {srd}, {so} offen offset:{i*1024}{nt} lds"
        its.append(('vm',t,tag))
    hdr=('multi',[f"s_add_u32 m0, s22, {base}",f"s_add_u32 {so}, s22, {tile*16384}"])
    if g is None: return [hdr]+its
    S.gaps[g].pre.append(hdr); S.gaps[g].extra+=1
    for i,it in enumerate(its): S.gaps[g+st*(1+i)].pre.append(it)
    return g+st*5
def barrier(g,waits):
    if waits: S.gaps[g-1].pre.append(('vmwait',waits))
    S.gaps[g].pre.append('s_barrier')
def qload(blk,dst,j,tag):
    if OPT.get('exp')==2: return ('vm',f"buffer_load_dwordx4 {R(dst[0],dst[1]+4*j,4)}, v{DK+j%4}, s[4:7], {BL[blk]['row'] if j<4 else HI[BL[blk]['row']]} offen offset:{(j%4)*1024}{' nt' if OPT.get('ntq',0) else ''}",tag)
    return ('vm',f"buffer_load_dwordx4 {R(dst[0],dst[1]+4*j,4)}, v{VQ}, s[4:7], {BL[blk]['row']} offen offset:{j*32}{' nt' if OPT.get('ntq',0) else ''}",tag)
NTQ=' nt' if OPT.get('ntq',0) else ''
def qdma(blk,m0base,tag):
    row=BL[blk]['row']; its=[]
    for hf in range(2):
        its.append(("multi",[f"s_add_u32 m0, s24, {m0base+hf*4096}","s_nop 0"]))
        for i in range(4): its.append(('vm',f"buffer_load_dwordx4 v{DK+i}, s[4:7], {row if hf==0 else HI[row]} offen offset:{i*1024}{NTQ} lds",tag))
    return its
def qread(blk,j,off):
    q=BL[blk]['q']; return f"ds_read_b128 {R(q[0],q[1]+4*j,4)}, v{TMP+j} offset:{off}"
init+=dma('K',0,0,'K0',None)+qdma('A1',131072,'QA')+qdma('B1',98304,'QB')
PFE=''
if OPT.get('pf',0) and OPT.get('pfe',0):
    npf=OPT['pf']
    PFE='\n'.join(["s_getpc_b64 s[60:61]","PFL:","s_lshr_b32 s62, s2, 3","s_and_b32 s62, s62, 3","s_lshl_b32 s62, s62, 2","s_add_u32 s62, s62, s21",f"s_mul_i32 s62, s62, {npf*1024}",f"s_min_u32 s62, s62, END-PFL-{npf*1024}","s_add_u32 s60, s60, s62","s_addc_u32 s61, s61, 0","v_lshlrev_b32 v60, 4, v3"]+[f"global_load_dwordx4 v[128:131], v60, s[60:61] offset:{i*1024}" for i in range(npf)])+'\n'
elif OPT.get('pf',0):
    npf=OPT['pf']
    init+=[('multi',["s_getpc_b64 s[60:61]","PFL:","s_lshr_b32 s62, s2, 3","s_and_b32 s62, s62, 3","s_lshl_b32 s62, s62, 2","s_add_u32 s62, s62, s21",f"s_mul_i32 s62, s62, {npf*1024}",f"s_min_u32 s62, s62, END-PFL-{npf*1024}",
        "s_add_u32 s60, s60, s62","s_addc_u32 s61, s61, 0","v_mbcnt_lo_u32_b32 v60, -1, 0","v_mbcnt_hi_u32_b32 v60, -1, v60","v_lshlrev_b32 v60, 4, v60"])]
    for i in range(npf): init.append(('vm',f"global_load_dwordx4 v[128:131], v60, s[60:61] offset:{i*1024}",'PF'))
init+=[('vmwait',['K0']),'s_barrier',('vmwait',['QA'])]+dma('V',0,0,'V0',None)+[qread('A1',j,32768) for j in range(8)]
init+=[('vmwait',['QB'])]+dma('K',1,1,'K1',None)+[qread('B1',j,0) for j in range(8)]
g=dma('V',1,1,'V1',OPT['dma0']); g=dma('K',2,2,'K2',g)
g=dma('V',2,2,'V2',step0[0]+16,2)
for t in range(16):
    g=step0[2*t]+GB
    w=[f'V{t}']+([f'K{t+1}'] if t<15 else ['QM'])
    barrier(g,w)
    if t+3<16:
        dma('K',(t+3)%8,(t+3)%4,f'K{t+3}',step0[2*t]+GB+(2 if GB%2==0 else 1),2)
        dma('V',(t+3)%8,(t+3)%4,f'V{t+3}',step0[2*t+1]+2,2)
def place(items,g,stride=1):
    for it in items:
        S.gaps[g].pre.append(it)
        if not (isinstance(it,tuple) and it[0]=='multi'): g+=stride
    return g
qa,qb=OPT.get('qa2',6),OPT.get('qb2',10)
place(qdma('A2',131072,'QA2'),step0[qa]+16+(0 if qa%2 else 0))
qw=OPT.get('qaw',3)
place([('vmwait',['QA2'])]+[qread('A2',j,32768) for j in range(8)],step0[qa+qw]+16)
place(qdma('B2',131072,'QB2'),step0[qb]+16)
S.gaps[step0[14]+1].pre.append(('vmwait',['QB2']))
for j in range(8): S.gaps[step0[14]+2*j+3].pre.append(qread('B2',j,32768))
place(qdma('M',131072,'QM'),step0[15]+16)
place([('vmwait',['QM'])]+[qread('M',j,32768) for j in range(8)],step0[17]+GB+2)
TO=[4,5,6,7,0,1,2,3]
g=step0[31]+17; barrier(g,[]); g=dma('K',TO[4],0,'MK4',g+1); dma('K',TO[5],1,'MK5',g)
for m,w,iss in ((1,['MK4'],[('K',6),('V',4)]),(2,['MK5'],[('K',7),('V',5)]),(3,['MK6','MV4'],[('V',6)]),(4,['MK7','MV5'],[('V',7)]),(5,['MV6'],[]),(6,['MV7'],[])):
    g=mst[m]; barrier(g,w); g+=1
    for k,x in iss: g=dma(k,TO[x],x%4,f'M{k}{x}',g)
last=-99
for n,fr in enumerate(frags):
    g=fr['first']-(LA if fr['first']>=step0[31]-8 else OPT.get('LAm',LA))
    for t in fr['reads']:
        if g<0: init.append(t); continue
        gg=max(g,last)
        while len(S.gaps[gg].pre)>=2 and gg<fr['first']-4: gg+=1
        S.gaps[gg].pre.append(t); last=gg
sm=[]; PACE=[0]
def maxcalc(bl,ready,dead):
    ops=[]
    for sb,neg,t,t2 in bl:
        ops.append(f"v_max3_f32 v{t}, v{sb}, v{sb+1}, v{sb+2}")
        for i in range(3,15,2): ops.append(f"v_max3_f32 v{t}, v{t}, v{sb+i}, v{sb+i+1}")
        ops+= [f"v_max_f32 v{t}, v{t}, v{sb+15}",f"v_mov_b32 v{t2}, v{t}","s_nop 1",f"v_permlane32_swap_b32 v{t}, v{t2}",
               f"v_max_f32 v{t}, v{t}, v{t2}",f"v_mul_f32 v{neg}, s32, v{t}"]
    for o in ops: sm.append(VOp(o,ready,dead))
    PACE[0]=max(PACE[0],ready)+(len(ops)*4+19)//20
def softmax(groups):
    vals=[]
    for sb,neg,l,s,ready,dead,first in groups:
        for i in range(8): vals.append((sb+8*s,i,neg,l,ready,dead,first and s==0 and i==0))
    n=len(vals); rr=[]
    for v in vals:
        r=max(PACE[0],v[4]) if OPT.get('pace',1) else v[4]
        r=min(r,v[5]-1); rr.append(r); PACE[0]=r+1
    def op(k,w,kk):
        b,i,neg,l,r,d,fi=vals[k]; r=rr[min(kk,n-1)]
        t=[f"v_fma_f32 v{b+i}, v{b+i}, s20, v{neg}",f"v_exp_f32 v{b+i}, v{b+i}",
           f"v_mov_b32 v{l}, v{b+i}" if fi else f"v_add_f32 v{l}, v{l}, v{b+i}",f"v_cvt_pk_bf16_f32 v{b+i//2}, v{b+i-1}, v{b+i}"][w]
        sm.append(VOp(t,r,min(d,r+OPT.get('slk',0)) if OPT.get('pace',1) else d))
    op(0,0,0)
    for k in range(n+1):
        if k<n: op(k,1,k)
        if k+1<n: op(k+1,0,k if vals[k+1][4]<=rr[k] else k+1)
        if k>=1:
            op(k-1,2,k)
            if vals[k-1][1]%2==1: op(k-1,3,k)
for u in range(32):
    A,B=SB[(u%2)*2],SB[(u%2)*2+1]; ra,rb=sdone[(u,0)]+2,sdone[(u,1)]+2
    la,lb=(LA1,LB1) if u<16 else (LA2,LB2); fi=(u%16==0)
    if fi: maxcalc([(A,NEGA,28,29),(B,NEGB,30,31)] if u==0 else [(A,NEGA,30,46),(B,NEGB,31,47)],rb,pdead[(u,0,0)])
    softmax([(A,NEGA,la,0,ra,pdead[(u,0,0)],fi),(B,NEGB,lb,0,rb,pdead[(u,1,0)],fi),
             (A,NEGA,la,1,ra,pdead[(u,0,1)],fi),(B,NEGB,lb,1,rb,pdead[(u,1,1)],fi)])
maxcalc([(SB[0],NEGA,56,57)],sdone[('m',0)]+2,pdead[('m',0,0)])
for m in range(8):
    r=sdone[('m',m)]+2
    softmax([(SB[m%4],NEGA,LA1,0,r,pdead[('m',m,0)],m==0),(SB[m%4],NEGA,LA1,1,r,pdead[('m',m,1)],False)])
S.stream(sm)
S.stream([])
def fin(l,r,mask,t):
    return [f"v_mov_b32 v{t}, v{l}","s_nop 1",f"v_permlane32_swap_b32 v{t}, v{l}",f"v_add_f32 v{t}, v{t}, v{l}",
            f"v_cmp_nlt_f32_e64 {mask}, v{t}, s30",f"v_rcp_f32 v{r}, v{t}"]
def unit(blk,d,g,r,k):
    o=BL[blk]['o']; b=o[1]+16*d+4*g; ops=[]; tmp=TMP+8*(k%2); ad=26+k%2
    ops.append(f"v_xor_b32 v{ad}, {(4*d+g)*16}, v{SWA}")
    if o[0]=='a':
        ops+=[f"v_accvgpr_read_b32 v{tmp+i}, a{b+i}" for i in range(8)]; b=tmp
    ops+=[f"v_mul_f32 v{b+i}, v{b+i}, v{r}" for i in range(8)]
    ops+=[f"v_cvt_pk_bf16_f32 v{b+i}, v{b+2*i}, v{b+2*i+1}" for i in range(4)]
    ops+=["s_nop 0",f"v_permlane32_swap_b32 v{b}, v{b+2}",f"v_permlane32_swap_b32 v{b+1}, v{b+3}"]
    ops.append(f"ds_write_b128 v{ad}, {R('v',b,4)}")
    return ops
def readback(blk):
    o=BL[blk]['o']; row=BL[blk]['row']; hi=HI[row]
    rd=[f"ds_read_b128 {R(o[0],o[1]+4*k,4)}, v{SRA} offset:{k*1024}" for k in range(8)]
    st=[f"buffer_store_dwordx4 {R(o[0],o[1]+4*k,4)}, v{DK+k%4}, s[16:19], {row if k<4 else hi} offen offset:{(k%4)*1024}{STM}" for k in range(8)]
    return rd,st
def epi(A,B,la,lb,ma,mb,ufin,dead):
    r0=step0[ufin]+25; ops=[]
    for o in fin(la,RA,ma,28)+fin(lb,RB,mb,29): ops.append(VOp(o,r0,dead))
    r1=(step0[17]+16 if ufin==15 else step0[ufin]+33); k=0
    for blk,r in ((A,RA),(B,RB)):
        for d in range(4):
            for g in (0,2):
                for o in unit(blk,d,g,r,k): ops.append(VOp(o,r1,dead))
                k+=1
        ops.append(VOp("RB "+blk,r1,dead)); ops[-1].cost=0
    return ops
e1=epi('A1','B1',LA1,LB1,'s[40:41]','s[42:43]',15,step0[30]-40); S.stream(e1)
e2=epi('A2','B2',LA2,LB2,'s[44:45]','s[46:47]',31,10**6); S.stream(e2)
if OPT.get('cw',1):
    tmp,_=linearize(S.gaps,init,OPT.get('ly',3)); gi=-1
    for l in tmp:
        if l.startswith('v_mfma'): gi+=1
        elif l.startswith('s_waitcnt lgkm') and gi>=0: S.gaps[gi].extra+=1
n1=len(e1); r1=step0[17]+16; d1=step0[OPT.get('e1end',30)]-OPT.get('e1m',60)
for k,o in enumerate(e1):
    if k>=12: o.hard=o.dead=r1+8+(d1-r1-8)*(k+1)/n1
if OPT.get('pace2',1):
    n2=len(e2); r2=mst[0]+1; d2=NG-OPT.get('e2m',14)
    for k,o in enumerate(e2):
        if k>=12: o.hard=o.dead=r2+(d2-r2)*(k+1)/n2
left=S.run(cap=OPT['cap'],soft=OPT['soft'])
assert all(len(x)==0 for x in left[:3]),[len(x) for x in left]
left2=[o.text for o in left[3]]
assert not any(x.startswith("v_rcp") for x in left2)
busy=-1; tailst=[]
for g in range(NG):
    v=S.gaps[g].valu; keep=[]
    for x in v:
        if x.startswith('ds_write'):
            assert g+1>busy,(g,busy)
            if g+1<NG: S.gaps[g+1].pre.append(x)
            else: left2.insert(0,x)
        elif x.startswith('RB'):
            rd,st=readback(x.split()[1])
            sp=OPT.get('stsp',6) if g<mst[0] else OPT.get('stsp2',3)
            if g+2+8<NG:
                for k in range(8): S.gaps[(g+2+k) if sp>3 else (g+1+k//2)].pre.append(rd[k])
                busy=g+2+7 if sp>3 else g+4
                for k in range(8):
                    gg=g+8+k if sp==0 else g+12+sp*k
                    if gg<NG: S.gaps[gg].pre.append(('vm',st[k],'st'))
                    else: tailst.append(st[k])
            else: left2.insert(0,x)
        else: keep.append(x)
    S.gaps[g].valu=keep
def expand(ops):
    o=[]
    for x in ops:
        if x.startswith('RB'):
            rd,st=readback(x.split()[1]); o+=rd
            for k in range(8): o+=[f"s_waitcnt lgkmcnt({7-k})",st[k]]
        else: o.append(x)
    return o
STG=[0]+[step0[u] for u in ((0,1,2,3,4,5,6,7) if OPT['stamp']==2 else (14,15,16,17,18,19,20,21,22,23) if OPT['stamp']==3 else (0,2,4,8,16,24,31))]+([] if OPT['stamp'] in (2,3) else [mst[0],mst[4],NG-1])
def stamp(i): return [f"s_memtime s[{72+2*i}:{73+2*i}]","s_waitcnt lgkmcnt(0)"]
if OPT['stamp']:
    for i,gg in enumerate(STG): S.gaps[gg].pre.append(('multi',stamp(i+1)))
    if OPT['stamp']==2:
        k=init.index('s_barrier'); init[k:k+1]=[('multi',stamp(10)),'s_barrier',('multi',stamp(11))]; init.insert(0,('multi',stamp(9+3)))
        STG=STG+[0,0,0]
body,vm=linearize(S.gaps,init,OPT.get('ly',3))
P=f"""s_cmp_ge_u32 s2, 256
s_cbranch_scc1 END
s_load_dwordx4 s[36:39], s[0:1], 0
s_load_dwordx4 s[52:55], s[0:1], 16
v_and_b32 v3, 63, v0
v_lshrrev_b32 v4, 6, v0
s_nop 0
v_readfirstlane_b32 s21, v4
{PFE if OPT.get('pfe',0)==2 else ''}s_lshr_b32 s3, s2, 4
s_lshl_b32 s3, s3, 3
s_and_b32 s34, s2, 7
s_add_u32 s3, s3, s34
s_lshr_b32 s34, s2, 3
s_and_b32 s34, s34, 1
s_mul_i32 s35, s3, 294912
s_mul_i32 s34, s34, 147456
s_add_u32 s35, s35, s34
s_lshl_b32 s3, s3, 17
s_lshl_b32 s22, s21, 12
s_lshl_b32 s24, s21, 13
s_lshl_b32 s25, s21, 14
s_add_u32 s26, s25, 8192
s_add_u32 s27, s25, 65536
s_add_u32 s28, s27, 8192
s_lshr_b32 s29, s21, 1
s_lshl_b32 s29, s29, 13
s_add_u32 s29, s29, 131072
s_and_b32 s31, s21, 1
s_add_u32 s68, s25, 4096
s_add_u32 s69, s26, 4096
s_add_u32 s70, s27, 4096
s_add_u32 s71, s28, 4096
s_add_u32 s59, s29, 4096
s_mov_b32 s20, 0x3e0293ee
s_mov_b32 s32, 0xbe0293ee
s_mov_b32 s30, 0x4e800000
v_and_b32 v5, 31, v3
v_lshrrev_b32 v6, 5, v3
v_and_b32 v7, 15, v3
v_lshrrev_b32 v8, 4, v3
v_lshlrev_b32 v{VQ}, 8, v5
v_lshl_add_u32 v{VQ}, v6, 4, v{VQ}
v_xor_b32 v9, v7, v8
v_lshlrev_b32 v9, 4, v9
v_lshl_add_u32 v{DK}, v8, 8, v9
v_xor_b32 v{DK+1}, 64, v{DK}
v_xor_b32 v{DK+2}, 0x80, v{DK}
v_xor_b32 v{DK+3}, 0xc0, v{DK}
v_lshlrev_b32 v9, 2, v8
v_xor_b32 v9, v7, v9
v_lshlrev_b32 v9, 4, v9
v_lshl_add_u32 v{DV}, v8, 8, v9
{PFE if OPT.get('pfe',0)==1 else ''}s_waitcnt lgkmcnt(0)
s_add_u32 s4, s36, s35
s_addc_u32 s5, s37, 0
s_mov_b32 s6, 147456
s_mov_b32 s7, 0x00020000
s_add_u32 s8, s38, s3
s_addc_u32 s9, s39, 0
s_mov_b32 s10, 131072
s_mov_b32 s11, 0x00020000
s_add_u32 s12, s52, s3
s_addc_u32 s13, s53, 0
s_mov_b32 s14, 131072
s_mov_b32 s15, 0x00020000
s_add_u32 s16, s54, s35
s_addc_u32 s17, s55, 0
s_mov_b32 s18, 147456
s_mov_b32 s19, 0x00020000
s_mov_b32 s38, s20
s_mov_b32 s39, s20""".split('\n')
A2=f"""v_xor_b32 v28, v6, v7
v_lshlrev_b32 v28, 4, v28
v_lshl_add_u32 v28, v5, 8, v28
v_lshrrev_b32 v29, 2, v7
v_and_b32 v30, 3, v7
v_lshl_add_u32 v31, v6, 2, v29
v_lshlrev_b32 v31, 8, v31
v_and_b32 v46, 1, v8
v_lshlrev_b32 v46, 5, v46
v_add_u32 v31, v31, v46
v_lshrrev_b32 v46, 1, v30
v_lshl_add_u32 v31, v46, 4, v31
v_and_b32 v46, 1, v30
v_lshl_add_u32 v31, v46, 3, v31
v_add_u32 v31, 0x10000, v31
v_lshlrev_b32 v29, 6, v29
s_lshl_b32 s34, s21, 13
s_add_u32 s34, s34, 131072
v_add_u32 v{SWA}, s34, v28
v_lshlrev_b32 v46, 4, v3
v_add_u32 v{SRA}, s34, v46
s_add_u32 s68, s25, 4096
s_add_u32 s69, s26, 4096
s_add_u32 s70, s27, 4096
s_add_u32 s71, s28, 4096
s_lshl_b32 s34, s31, 13""".split('\n')
for d in range(4):
    A2+= [f"v_xor_b32 v46, {d*64}, v29",f"v_add_u32 v47, v31, v46",f"v_add_u32 v{MVA+d}, s34, v47"]
    A2.append(f"v_mov_b32 v{48+d}, v47")
for j in range(8): A2+=[f"v_xor_b32 v{52+j}, {j*32}, v28",f"v_add_u32 v{MKA+j}, s34, v{52+j}"]
A2+=[f"v_mov_b32 v{KA+j}, v{52+j}" for j in range(8)]+[f"v_mov_b32 v{VA+d}, v{48+d}" for d in range(4)]
A2+=[f"s_sub_u32 s34, 32768, 0",f"v_subrev_u32 v46, s34, v{SWA}"]+[f"v_xor_b32 v{TMP+j}, {j*32}, v46" for j in range(8)]
k=next(i for i,l in enumerate(body) if l.startswith('s_waitcnt vmcnt'))
body=body[:k]+A2+body[k:]
T=["s_waitcnt lgkmcnt(0)"]+tailst+["s_nop 7","s_nop 3"]
h=len(left2)//2
while h<len(left2) and not (h==0 or left2[h-1].startswith(('ds_write','RB'))): h+=1
T+=[f"v_mov_b32 v28, v{LA1}","s_nop 1",f"v_permlane32_swap_b32 v28, v{LA1}",f"v_add_f32 v28, v28, v{LA1}",f"v_mov_b32 v29, v{NEGA}",
    "v_mbcnt_lo_u32_b32 v3, -1, 0","v_mbcnt_hi_u32_b32 v3, -1, v3","v_lshlrev_b32 v30, 3, v3","s_lshl_b32 s34, s21, 9","s_add_u32 s34, s34, 65536","s_xor_b32 s35, s34, 512",
    "v_add_u32 v31, s35, v30","v_add_u32 v30, s34, v30","v_lshlrev_b32 v46, 4, v3","s_lshl_b32 s34, s21, 13",
    "s_xor_b32 s35, s34, 8192","v_add_u32 v47, s35, v46","v_add_u32 v46, s34, v46","ds_write_b64 v30, v[28:29]",
    "s_cmp_eq_u32 s31, 0","s_cbranch_scc0 PAR1"]
for p in (0,1):
    if p: T.append("PAR1:")
    for k in range(8): T.append(f"ds_write_b128 v46, {R('a',128+32*(1-p)+4*k,4)} offset:{k*1024}")
    for k in range(32): T.append(f"v_accvgpr_read_b32 v{96+k}, a{128+32*p+k}")
    if not p: T.append("s_branch PARJ")
T+=["PARJ:"]+expand(left2[:h])+["s_waitcnt lgkmcnt(0)","s_barrier","ds_read_b64 v[2:3], v31"]
for k in range(8): T.append(f"ds_read_b128 {R('v',64+4*k,4)}, v47 offset:{k*1024}")
T+=expand(left2[h:])
T+=["s_waitcnt lgkmcnt(0)",f"v_mov_b32 v{OOB}, 0x80000000","v_cmp_nlt_f32_e64 s[48:49], v28, s30","v_cmp_nlt_f32_e64 s[50:51], v2, s30","v_min_f32 v4, v29, v3",
    "v_sub_f32 v5, v4, v29","v_sub_f32 v6, v4, v3","v_exp_f32 v5, v5","v_exp_f32 v6, v6","s_or_b64 s[48:49], s[48:49], s[50:51]",
    "v_mul_f32 v7, v28, v5","v_fma_f32 v7, v2, v6, v7","v_rcp_f32 v7, v7","s_lshl_b32 s34, s31, 7",f"v_add_u32 v8, s34, v{VQ}",
    "v_mul_f32 v5, v5, v7","v_mul_f32 v6, v6, v7",f"v_cndmask_b32_e64 v8, v8, v{OOB}, s[48:49]"]
for k in range(32): T.append(f"v_mul_f32 v{96+k}, v{96+k}, v5")
T.append("s_waitcnt lgkmcnt(0)")
for k in range(32): T.append(f"v_fma_f32 v{96+k}, v{64+k}, v6, v{96+k}")
for un in range(4):
    b=96+8*un
    T+=[f"v_cvt_pk_bf16_f32 v{b+i}, v{b+2*i}, v{b+2*i+1}" for i in range(4)]
    T+=["s_nop 1",f"v_permlane32_swap_b32 v{b}, v{b+2}",f"v_permlane32_swap_b32 v{b+1}, v{b+3}",
        f"buffer_store_dwordx4 {R('v',b,4)}, v8, s[16:19], s29 offen offset:{(un//2)*64+(un%2)*32}{STM}"]
T+=["s_cmp_eq_u32 s31, 0","s_cbranch_scc1 KEEPM","s_mov_b64 s[48:49], 0","KEEPM:",
    "s_or_b64 s[50:51], s[40:41], s[42:43]","s_or_b64 s[50:51], s[50:51], s[44:45]","s_or_b64 s[50:51], s[50:51], s[46:47]",
    "s_or_b64 s[50:51], s[50:51], s[48:49]","s_cbranch_scc0 END"]
W=["s_waitcnt vmcnt(0)","s_mov_b32 s56, 0","v_mbcnt_lo_u32_b32 v3, -1, 0","v_mbcnt_hi_u32_b32 v3, -1, v3","v_and_b32 v4, 31, v3","v_lshrrev_b32 v5, 5, v3",
   "v_lshlrev_b32 v4, 1, v4","v_lshl_add_u32 v8, v5, 10, v4","SLOOP:","s_cmp_eq_u64 s[40:41], 0","s_cbranch_scc1 SNEXT"]
W+=[f"buffer_load_dwordx4 {R('v',128+4*j,4)}, v{VQ}, s[4:7], s25 offen offset:{j*32}" for j in range(8)]
def sqk():
    o=[f"buffer_load_dwordx4 {R('v',160+4*j,4)}, v{VQ}, s[8:11], s57 offen offset:{j*32}" for j in range(8)]
    o.append("s_waitcnt vmcnt(0)")
    o+=[f"{MF} v[64:79], {R('v',160+4*j,4)}, {R('v',128+4*j,4)}, {'0' if j==0 else 'v[64:79]'}" for j in range(8)]
    return o+["s_nop 7","s_nop 7"]
W+=["v_mov_b32 v10, 0xff800000","s_mov_b32 s57, 0","SMAX:"]+sqk()
W+=[f"v_max_f32 v10, v10, v{64+i}" for i in range(16)]
W+=["s_add_u32 s57, s57, 8192","s_cmp_lt_u32 s57, 131072","s_cbranch_scc1 SMAX",
    "v_mov_b32 v11, v10","s_nop 1","v_permlane32_swap_b32 v10, v11","v_max_f32 v10, v10, v11","v_mul_f32 v10, s32, v10","v_mov_b32 v12, 0"]
W+=[f"v_mov_b32 v{192+i}, 0" for i in range(64)]
W+=["s_mov_b32 s57, 0","SPV:"]+sqk()
for i in range(16): W+=[f"v_fma_f32 v{64+i}, v{64+i}, s20, v10",f"v_exp_f32 v{64+i}, v{64+i}","s_nop 0",f"v_add_f32 v12, v12, v{64+i}"]
W+=[f"v_cvt_pk_bf16_f32 v{80+i}, v{64+2*i}, v{65+2*i}" for i in range(8)]
for s in range(2):
    W.append(f"s_add_u32 s58, s57, {s*4096}")
    for d in range(4):
        W+=[f"buffer_load_ushort v{96+8*d+i}, v8, s[12:15], s58 offen offset:{(8*(i//4)+i%4)*256+d*64}" for i in range(8)]
    W.append("s_waitcnt vmcnt(0)")
    W+=[f"v_lshl_or_b32 v{160+i}, v{97+2*i}, 16, v{96+2*i}" for i in range(16)]
    W.append("s_nop 1")
    W+=[f"{MF} {R('v',192+16*d,16)}, {R('v',160+4*d,4)}, {R('v',80+4*s,4)}, {R('v',192+16*d,16)}" for d in range(4)]
    W+=["s_nop 7","s_nop 7"]
W+=["s_add_u32 s57, s57, 8192","s_cmp_lt_u32 s57, 131072","s_cbranch_scc1 SPV",
    "v_mov_b32 v11, v12","s_nop 1","v_permlane32_swap_b32 v11, v12","v_add_f32 v11, v11, v12","v_rcp_f32 v11, v11",
    f"v_cndmask_b32_e64 v13, v{OOB}, v{VQ}, s[40:41]"]
for d in range(4):
    for g in (0,2):
        b=192+16*d+4*g
        W+=[f"v_mul_f32 v{b+i}, v{b+i}, v11" for i in range(8)]
        W+=[f"v_cvt_pk_bf16_f32 v{b+i}, v{b+2*i}, v{b+2*i+1}" for i in range(4)]
        W+=["s_nop 1",f"v_permlane32_swap_b32 v{b}, v{b+2}",f"v_permlane32_swap_b32 v{b+1}, v{b+3}",
            f"buffer_store_dwordx4 {R('v',b,4)}, v13, s[16:19], s25 offen offset:{d*64+g*16}"]
W+=["s_waitcnt vmcnt(0)","SNEXT:"]
for i in range(4): W+=[f"s_mov_b64 s[{40+2*i}:{41+2*i}], s[{42+2*i}:{43+2*i}]",f"s_mov_b32 s{25+i}, s{26+i}"]
W+=["s_add_u32 s56, s56, 1","s_cmp_lt_u32 s56, 5","s_cbranch_scc1 SLOOP"]
allc=P+body+T+W
if OPT['stamp']:
    n=len(STG)+1
    E=stamp(n)+["s_waitcnt vmcnt(0)"]+stamp(n+1)+["s_memrealtime s[60:61]","s_load_dwordx2 s[64:65], s[0:1], 40","s_waitcnt lgkmcnt(0)","s_mov_b32 s66, 0x100000","s_mov_b32 s67, 0x00020000",
       "s_lshl_b32 s63, s2, 2","s_add_u32 s63, s63, s21","s_lshl_b32 s63, s63, 7","v_mov_b32 v46, s63"]
    for i in range(1,n+2): E+=[f"s_sub_u32 s62, s{72+2*i}, s72","v_mov_b32 v47, s62",f"buffer_store_dword v47, v46, s[64:67], 0 offen offset:{4*(i-1)}"]
    E+=["s_getreg_b32 s62, hwreg(HW_REG_XCC_ID, 0, 4)","s_and_b32 s60, s2, 7","s_sub_u32 s62, s62, s60","v_mov_b32 v47, s62",f"buffer_store_dword v47, v46, s[64:67], 0 offen offset:{4*(n+3)}","s_memrealtime s[60:61]","s_waitcnt lgkmcnt(0)","s_sub_u32 s62, s60, s58","v_mov_b32 v47, s62",f"buffer_store_dword v47, v46, s[64:67], 0 offen offset:{4*(n+1)}",
        "v_mov_b32 v47, s58",f"buffer_store_dword v47, v46, s[64:67], 0 offen offset:{4*(n+2)}"]
    E+=["s_cmp_eq_u32 s2, 77","s_cbranch_scc0 NODBG","s_cmp_eq_u32 s21, 0","s_cbranch_scc0 NODBG","s_load_dwordx2 s[64:65], s[0:1], 32","s_waitcnt lgkmcnt(0)","s_mov_b32 s66, 256","v_mov_b32 v46, 0"]
    for i in range(1,n+2): E+=[f"s_sub_u32 s62, s{72+2*i}, s72","v_mov_b32 v47, s62",f"buffer_store_dword v47, v46, s[64:67], 0 offen offset:{4*(i-1)}","s_nop 1"]
    E+=["s_sub_u32 s62, s60, s58","v_mov_b32 v47, s62",f"buffer_store_dword v47, v46, s[64:67], 0 offen offset:{4*(n+1)}","NODBG:"]
    k=T.index("KEEPM:")
    allc=P[:2]+["s_memrealtime s[58:59]"]+stamp(0)+P[2:]+body+T[:k+1]+E+T[k+1:]+W
errs=check_hazards(allc)
for e in errs[:20]: print(e,file=sys.stderr)
print("hazards",len(errs),"lines",len(allc),"gaps",NG,"left2",len(left2),file=sys.stderr)
import collections
cost=0
for g in S.gaps:
    c=sum(8 if x.split()[0] in TRANS else 4 for x in g.valu); n=len(g.pre)+g.extra
    cost+=max(32,8+c+ (0 if n<=1 else 4*(n-1)))
print("est cycles",cost,file=sys.stderr)
hdr=open('cdna_kernels/'+NAME+'.s.ref').read().split('\n')
o=[]
for l in hdr:
    if l.startswith('; @launch'): o.append('; @launch grid=(256,1,1) block=(256,1,1) lds=163840')
    else: o.append(l)
    if l.startswith(NAME+'_kernel:'): break
o+=[('' if l.endswith(':') else '    ')+l for l in allc]
o+=["END:","s_endpgm",'.section .rodata,"a"','.p2align 6',f".amdhsa_kernel {NAME}_kernel","  .amdhsa_next_free_vgpr 512","  .amdhsa_next_free_sgpr 102",
"  .amdhsa_accum_offset 256","  .amdhsa_group_segment_fixed_size 0","  .amdhsa_kernarg_size 48","  .amdhsa_user_sgpr_count 2",
"  .amdhsa_user_sgpr_kernarg_segment_ptr 1","  .amdhsa_system_sgpr_workgroup_id_x 1",".end_amdhsa_kernel",""]
open(sys.argv[1],'w').write('\n'.join(o))
```
